```python
import torch

def _softmax(x, axis=-1):
    return torch.softmax(x, dim=axis)
def _gelu(x):
    return torch.nn.functional.gelu(x, approximate="tanh")
def _silu(x):
    return torch.nn.functional.silu(x)
def _sigmoid(x):
    return torch.sigmoid(x)
def _layernorm(x, axis=-1, eps=1e-5):
    m = x.mean(dim=axis, keepdim=True)
    v = x.var(dim=axis, keepdim=True, unbiased=False)
    return (x - m) / torch.sqrt(v + eps)
def _scatter_add(tgt, idx, src, axis=0):
    return tgt.clone().index_add_(axis, idx, src)
def _segment_sum(src, seg, n):
    out = torch.zeros((n,) + src.shape[1:], dtype=src.dtype)
    return out.index_add_(0, seg, src)
def _pad(x, pw):
    flat = tuple(v for pair in reversed(pw) for v in pair)
    return torch.nn.functional.pad(x, flat)

kernel_name = 'interleave_layers__sliding_local_dilated__dense_activation_silu__prompt'

def setup_inputs():

    _w = (lambda a: (lambda t: t.to(torch.bfloat16) if t.is_floating_point() else t)(torch.as_tensor(a)))
    def _A_setup():
        B, S, D = 1, 2048, 512
        return {
            "x": _w((lambda *s: torch.randn(*s, dtype=torch.bfloat16) * 0.05)(B, S, D)),
            "wqkv": _w((lambda *s: torch.randn(*s, dtype=torch.bfloat16) * 0.05)(D, 3 * D)),
            "wo": _w((lambda *s: torch.randn(*s, dtype=torch.bfloat16) * 0.05)(D, D)),
        }
    _A_in = _A_setup()

    def _B_setup():
        B, S, D, F = 1, 2048, 512, 1792
        return {
            "x": _w((lambda *s: torch.randn(*s, dtype=torch.bfloat16) * 0.05)(B, S, D)),
            "w1": _w((lambda *s: torch.randn(*s, dtype=torch.bfloat16) * 0.8)(D, F) * (D ** -0.5)),
            "w2": _w((lambda *s: torch.randn(*s, dtype=torch.bfloat16) * 0.8)(F, D) * (F ** -0.5)),
        }
    _B_in = _B_setup()

    return {
        "A_x": _A_in["x"],
        "A_wqkv": _A_in["wqkv"],
        "A_wo": _A_in["wo"],
        "B_x": _B_in["x"],
        "B_w1": _B_in["w1"],
        "B_w2": _B_in["w2"],
    }

def reference(A_x, A_wqkv, A_wo, B_x, B_w1, B_w2):
    def _A_ref(x, wqkv, wo):
        B, S, D = x.shape
        H = 32; Dh = D // H
        W, dil = 8, 2
        qkv = (lambda x, *d: x.permute(*d))((x @ wqkv).reshape(B, S, 3, H, Dh), 2, 0, 3, 1, 4)
        q, k, v = qkv[0], qkv[1], qkv[2]
        scale = Dh ** -0.5
        pos = torch.arange(S)
        off = torch.arange(W) * dil
        idx = pos[:, None] - off[None, :]
        mask = idx >= 0
        idx_c = torch.where(mask, idx, 0).reshape(-1)
        kg = k[:, :, idx_c, :].reshape(B, H, S, W, Dh)
        vg = v[:, :, idx_c, :].reshape(B, H, S, W, Dh)
        logits = torch.einsum("bhsd,bhswd->bhsw", q, kg) * scale
        logits = torch.where(mask[None, None, :, :], logits, -1e9)
        attn = _softmax(logits, axis=-1)
        o = torch.einsum("bhsw,bhswd->bhsd", attn, vg)
        return (lambda x, *d: x.permute(*d))(o, 0, 2, 1, 3).reshape(B, S, D) @ wo

    def _B_ref(x, w1, w2):
        h = torch.einsum("bsd,df->bsf", x, w1)
        h = _silu(h)
        out = torch.einsum("bsf,fd->bsd", h, w2)
        return out

    x = A_x
    x = x + _A_ref(_layernorm(x, axis=-1), A_wqkv, A_wo)
    x = x + _B_ref(_layernorm(x, axis=-1), B_w1, B_w2)
    x = x + _A_ref(_layernorm(x, axis=-1), A_wqkv, A_wo)
    x = x + _B_ref(_layernorm(x, axis=-1), B_w1, B_w2)
    return x
```

```python
import re
TRANS=("v_exp_f32","v_log_f32","v_rcp_f32","v_rsq_f32","v_sqrt_f32")
def regs(op):
    op=op.strip()
    op=op.lstrip("-").replace("abs(","").replace(")","")
    m=re.fullmatch(r"([vas])(\d+)",op)
    if m: return {(m.group(1),int(m.group(2)))}
    m=re.fullmatch(r"([vas])\[(\d+):(\d+)\]",op)
    if m: return {(m.group(1),i) for i in range(int(m.group(2)),int(m.group(3))+1)}
    if op=="vcc": return {("s","vcc")}
    if op=="m0": return {("s","m0")}
    return set()
class I:
    def __init__(s,t):
        s.t=t; p=t.split(None,1); s.op=p[0]
        a=p[1] if len(p)>1 else ""
        s.a=[x.strip().split(" ")[0] for x in a.split(",")] if a else []
        o=s.op; R=[regs(x) for x in s.a]
        s.mfma=o.startswith("v_mfma"); s.valu=o.startswith("v_") and not s.mfma
        s.salu=o.startswith("s_"); s.ds=o.startswith("ds_"); s.vm=o.startswith(("buffer_","global_"))
        s.dst=set(); s.src=set(); s.srcc=set(); s.sdata=set()
        s.lab=t.endswith(":")
        if s.lab: s.salu=False; return
        if s.mfma: s.dst=R[0]; s.src=R[1]|R[2]; s.srcc=R[3]
        elif s.valu:
            s.dst=set(R[0]); s.src=set().union(*R[1:]) if len(R)>1 else set()
            if "swap" in o: s.dst|=R[1]; s.src|=R[0]
            if o.startswith(("v_fmac","v_dot2c")): s.src|=R[0]
        elif s.ds:
            if "write" in o: s.src=set().union(*R)
            else: s.dst=R[0]; s.src=set().union(*R[1:])
        elif s.vm:
            if " lds" in t: s.src=set().union(*R)|{("s","m0")}
            elif "store" in o or "atomic" in o:
                s.src=set().union(*R)
                if "x4" in o or "x3" in o: s.sdata=R[0] if o.startswith("buffer") else R[1]
            else: s.dst=R[0]; s.src=set().union(*R[1:])
        elif s.salu:
            if o.startswith(("s_cmp","s_wait","s_barrier","s_nop","s_cbranch","s_branch","s_endpgm","s_sleep","s_setprio")): s.src=set().union(*R) if R else set()
            elif R: s.dst=R[0]; s.src=set().union(*R[1:]) if len(R)>1 else set()
        s.states=(int(s.a[0])+1) if o=="s_nop" else 1
def need(p,c):
    n=0
    if p.mfma:
        ps=8 if "32x32" in p.op else 4
        if c.mfma:
            if p.dst&c.src: n=max(n,{4:8,8:12}[ps])
            if p.dst&c.srcc and p.dst!=c.srcc: n=max(n,{4:6,8:10}[ps])
            if p.dst&c.dst and p.dst!=c.srcc: n=max(n,{4:8,8:12}[ps])
        elif (c.valu or c.ds or c.vm):
            if p.dst&(c.src|c.dst): n=max(n,{4:8,8:12}[ps])
            if p.srcc&c.dst: n=max(n,{4:3,8:7}[ps])
    if p.valu:
        vd={r for r in p.dst if r[0]!="s"}; sd={r for r in p.dst if r[0]=="s"}
        if c.mfma and vd&(c.src|c.srcc): n=max(n,2)
        if c.valu and vd&c.src:
            if p.op in TRANS: n=max(n,1)
            if "permlane" in c.op or "dpp" in c.t or "row_" in c.t: n=max(n,2)
            if "readlane" in c.op or "readfirstlane" in c.op: n=max(n,1)
            if p.op.startswith("v_dot") and p.op!=c.op: n=max(n,3)
        if c.valu and p.op.startswith("v_dot") and p.op!=c.op and vd&c.dst: n=max(n,3)
        if c.valu and (sd&c.src or (("s","vcc") in sd and "cndmask" in c.op)): n=max(n,2)
        if c.vm and sd&c.src: n=max(n,5)
        if c.salu and sd&c.src: n=max(n,2)
    if p.vm and p.sdata&c.dst and (c.valu or c.mfma or c.ds or c.vm): n=max(n,2)
    if p.salu and ("s","m0") in p.dst and ("s","m0") in c.src and c.vm: n=max(n,1)
    return n
def fix(lines):
    out=[]; hist=[]
    for t in lines:
        if t.startswith((";",".")): out.append(t); continue
        c=I(t)
        if c.lab: out.append(t); continue
        d=0; req=0
        for p in reversed(hist):
            req=max(req,need(p,c)-d); d+=p.states
            if d>=12: break
        if req>0:
            out.append(f"s_nop {req-1}"); hist.append(I(f"s_nop {req-1}"))
        out.append(t); hist.append(c); hist=hist[-14:]
    return out
```

```python
import sys
from asmlib import fix
NAME="interleave_layers__sliding_local_dilated__dense_activation_silu__prompt"
OPT=dict(stamp=0, stop=99, nodot=0)
for a in sys.argv[2:]:
    k,v=a.split("="); OPT[k]=int(v)
L=[]
def e(*x):
    for t in x:
        for u in t.split("\n"):
            u=u.strip()
            if u: L.append(u)
def V(n,c=1): return f"v{n}" if c==1 else f"v[{n}:{n+c-1}]"
def A(n,c=1): return f"a{n}" if c==1 else f"a[{n}:{n+c-1}]"
def merge(main,*fill):
    out=[]; n=len(main); pos=[0]*len(fill)
    for i,m in enumerate(main):
        out.append(m)
        for k,f in enumerate(fill):
            tgt=(len(f)*(i+1)+n-1)//n
            while pos[k]<min(tgt,len(f)): out.append(f[pos[k]]); pos[k]+=1
    return out
MB=1<<20
O_OFF,X1_OFF,H_OFF,XA_OFF,SA_OFF,S1_OFF,FL_OFF,ST_OFF=0,2*MB,4*MB,12*MB,14*MB,14*MB+262144,40*MB,41*MB
SX,SWQ,SWO,SW1,SW2,SWS,SOUT,SDBG="s[4:7]","s[8:11]","s[12:15]","s[16:19]","s[20:23]","s[24:27]","s[28:31]","s[32:35]"
sG,sJ,sW,sL="s36","s37","s38","s39"
sKS=40
sES,sT0,sT1,sT2,sLB,sPH,sHB,sCB="s56","s57","s58","s59","s60","s61","s62","s63"
sB="s96"; sONE="s97"; sTO="s98"
vLANE,vL16,vRES,vX1,vWQ,vFL,vFL2=0,1,2,10,11,12,13
vR4,vG,vC8=14,15,16
vONES=28
nst=[0]
def stamp():
    if OPT["stamp"]:
        i=nst[0]; nst[0]+=1
        if i>=15: return
        e(f"s_memrealtime s[94:95]","s_waitcnt lgkmcnt(0)",f"s_cmp_eq_u32 {sL}, 0",f"s_cselect_b32 s{64+i}, s94, s{64+i}",f"s_cselect_b32 s{79+i}, s{79+i}, s94")
def signal(n=0):
    lab=f"Lsig{len(L)}"
    e(f"s_waitcnt vmcnt({n})","s_barrier",f"s_add_u32 {sPH}, {sPH}, 1",f"s_cmp_lg_u32 {sW}, 0",f"s_cbranch_scc1 {lab}",
      f"v_mov_b32 v17, {sPH}",f"s_lshl_b32 {sT0}, {sG}, 8",f"s_lshl_b32 {sT1}, {sJ}, 2",f"s_add_u32 {sT0}, {sT0}, {sT1}",f"s_add_u32 {sT0}, {sT0}, {FL_OFF}",f"v_mov_b32 v18, {sT0}",
      "s_mov_b64 exec, 1",f"buffer_store_dword v17, v18, {SWS}, 0 offen sc1","s_mov_b64 exec, -1",f"{lab}:")
def poll(vaddr,srd=SWS,tgt=sPH):
    lab=f"Lpoll{len(L)}"
    e(f"s_mov_b32 {sTO}, 0x40000",f"{lab}:",f"buffer_load_dword v17, v{vaddr}, {srd}, 0 offen sc1",f"s_sub_u32 {sTO}, {sTO}, 1","s_cbranch_scc1 Lend",
      "s_waitcnt vmcnt(0)",f"v_cmp_le_u32 vcc, {tgt}, v17","s_cmp_eq_u64 vcc, exec",f"s_cbranch_scc0 {lab}")
def dma(vo,srd,so): e(f"buffer_load_dwordx4 v{vo}, {srd}, {so} offen lds")
def xsum(r,t,op="v_add_f32"):
    e(f"v_mov_b32 v{t}, v{r}",f"v_permlane16_swap_b32 v{r}, v{t}",f"{op} v{r}, v{r}, v{t}",f"v_mov_b32 v{t}, v{r}",f"v_permlane32_swap_b32 v{r}, v{t}",f"{op} v{r}, v{r}, v{t}")
def stats(su,sq,t):
    e(f"v_add_f32 v{su}, v{su}, v{su+2}",f"v_add_f32 v{sq}, v{sq}, v{sq+2}")
    xsum(su,t); xsum(sq,t)
    e(f"v_mul_f32 v{su}, 0x3b000000, v{su}",f"v_mul_f32 v{sq}, 0x3b000000, v{sq}",f"v_fma_f32 v{sq}, -v{su}, v{su}, v{sq}",f"v_max_f32 v{sq}, 0, v{sq}",
      f"v_add_f32 v{sq}, 0x3727c5ac, v{sq}",f"v_rsq_f32 v{sq}, v{sq}")
def mfma(d,a,b,c): return f"v_mfma_f32_16x16x32_bf16 {d}, {a}, {b}, {c}"
def tr(d,ad,off): return f"ds_read_b64_tr_b16 {d}, v{ad} offset:{off}"

sT3,sT4="s40","s41"
sRT2,sRT1="s42","s43"
vWA=10
def D(m0,so,vo,srd): return f"{m0}\n{so}\nbuffer_load_dwordx4 v{vo}, {srd}, {sT3} offen lds"
def dma_wq():
    return [D(f"s_add_u32 m0, s45, {p*32768+s*2048+ee*1024}",f"s_add_u32 {sT3}, s44, {(32*s+16*ee)*3072+p*1024}",vWQ,SWQ) for s in range(4) for ee in range(2) for p in range(3)]
def dma_wo():
    return [D(f"s_add_u32 m0, s47, {98304+q*1024}",f"s_add_u32 {sT3}, s46, {q*8192}",vWA,SWO) for q in range(16)]
def dma_w1(half):
    return [D(f"s_add_u32 m0, s49, {(8*half+s)*7168+q*1024}",f"s_add_u32 {sT3}, s48, {(8*half+s)*114688}",52+q,SW1) for s in range(2) for q in range(7)]
P4STEPS=[(112*jj+32*u,112*jj+32*u+16) for jj in range(4) for u in range(3)]+[(96,112+96),(224+96,336+96)]
def dma_w2(steps):
    return [D(f"s_add_u32 m0, s51, {(st%10)*4096+ee*2048+h*1024}",f"s_add_u32 {sT3}, s50, {(P4STEPS[st][ee]+8*h)*1024}",vWA,SW2) for st in steps for ee in range(2) for h in range(2)]
def rd128(base,v0):
    e(f"v_lshrrev_b32 v17, 1, v{vR4}",f"v_and_b32 v17, 3, v17",f"v_lshl_add_u32 v18, v{vR4}, 7, v{vC8}",f"v_add_u32 v18, {base}, v18")
    for t in range(4): e(f"v_xor_b32 v{v0+t}, {t}, v17",f"v_lshl_add_u32 v{v0+t}, v{v0+t}, 5, v18")
def cap(f,*a):
    n=len(L); f(*a); r=L[n:]; del L[n:]; return r
def spread(main,fill,lo=0.0,hi=1.0):
    m2=[]
    for x in main:
        if m2 and m2[-1].split("\n")[-1].startswith("s_cmp"): m2[-1]+="\n"+x
        else: m2.append(x)
    main=m2
    n=len(main); a=int(n*lo); b=max(a+1,int(n*hi)); return main[:a]+merge(main[a:b],fill)+main[b:]
def pkfma(a,c,mean): return f"v_pk_fma_f32 {V(a,2)}, {V(mean,2)}, {V(c,2)}, {V(a,2)} op_sel_hi:[0,1,1] neg_lo:[1,0,0] neg_hi:[1,0,0]"
def pkmul(d,a,pair,hi): return f"v_pk_mul_f32 {V(d,2)}, {V(a,2)}, {V(pair,2)} "+("op_sel:[0,1] op_sel_hi:[1,1]" if hi else "op_sel_hi:[1,0]")
def xepi(acc,xoff,soff,nxt,st=True):
    for k in range(8):
        r=vRES+k
        e(f"v_lshlrev_b32 v{96+2*k}, 16, v{r}",f"v_and_b32 v{97+2*k}, 0xffff0000, v{r}")
        if acc is not None: e(f"v_pk_add_f32 {V(96+2*k,2)}, {V(96+2*k,2)}, {V(acc+2*k,2)}",f"v_cvt_pk_bf16_f32 v{r}, v{96+2*k}, v{97+2*k}")
    if not st: return
    e(f"s_lshl_b32 {sT1}, {sCB}, 11",f"s_add_u32 {sT1}, {sT1}, {sRT2}",f"s_add_u32 {sT1}, {sT1}, {sLB}",f"s_add_u32 {sT1}, {sT1}, {xoff+nxt}")
    for u in range(2): e(f"buffer_store_dwordx4 {V(vRES+4*u,4)}, v{vL16}, {SWS}, {sT1} offen offset:{u*1024} sc1")
    e(f"v_pk_mul_f32 v[20:21], v[96:97], v[96:97]")
    for k in range(1,8): e(f"v_pk_fma_f32 v[20:21], {V(96+2*k,2)}, {V(96+2*k,2)}, v[20:21]",f"v_pk_add_f32 v[96:97], v[96:97], {V(96+2*k,2)}")
    e("v_add_f32 v21, v20, v21","v_add_f32 v20, v96, v97")
    xsum(20,17); xsum(21,18)
    e(f"s_lshr_b32 {sT1}, {sRT2}, 4",f"s_lshl_b32 {sT0}, {sCB}, 7",f"s_add_u32 {sT1}, {sT1}, {sT0}",f"s_add_u32 {sT1}, {sT1}, {sLB}",f"s_add_u32 {sT1}, {sT1}, {soff+nxt}",f"v_lshlrev_b32 v17, 3, v{vLANE}",
      "s_mov_b64 exec, 0xffff",f"buffer_store_dwordx2 v[20:21], v17, {SWS}, {sT1} offen sc1","s_mov_b64 exec, -1")
def colsum(reads,bufreg,cs,lab):
    e(f"s_cmp_lg_u32 {sL}, 0",f"s_cbranch_scc1 {lab}")
    e(*reads(0))
    for s in range(16):
        e("s_waitcnt lgkmcnt(0)")
        e(*merge([mfma(A(cs+4*t,4),bufreg(s,t),V(vONES,4),A(cs+4*t,4) if s else "0") for t in range(7)],reads(s+1) if s<15 else []))
    e("s_nop 7",f"{lab}:")

e(f"s_cmp_ge_u32 s2, 256","s_cbranch_scc1 Lend",f"s_mov_b32 {sB}, s2")
e("s_load_dwordx2 s[4:5], s[0:1], 0","s_load_dwordx2 s[8:9], s[0:1], 8","s_load_dwordx2 s[12:13], s[0:1], 16","s_load_dwordx2 s[16:17], s[0:1], 32","s_load_dwordx2 s[20:21], s[0:1], 40",
  "s_load_dwordx2 s[24:25], s[0:1], 64","s_load_dwordx2 s[28:29], s[0:1], 48","s_load_dwordx2 s[32:33], s[0:1], 56")
for b,n in ((4,2*MB),(8,512*3072),(12,512*1024),(16,512*3584),(20,1792*1024),(24,64*MB),(28,2*MB),(32,256)):
    e(f"s_mov_b32 s{b+2}, {n}",f"s_mov_b32 s{b+3}, 0x20000")
e(f"v_lshrrev_b32 v17, 6, v0",f"v_and_b32 v{vLANE}, 63, v0",f"v_readfirstlane_b32 {sW}, v17",
  f"s_and_b32 {sT0}, s2, 7",f"s_lshr_b32 {sT1}, s2, 3",f"s_and_b32 {sJ}, {sT1}, 15",f"s_lshr_b32 {sT1}, {sT1}, 4",f"s_lshl_b32 {sG}, {sT0}, 1",f"s_add_u32 {sG}, {sG}, {sT1}",
  f"s_lshr_b32 {sHB}, {sJ}, 3",f"s_and_b32 {sCB}, {sJ}, 7",
  f"s_lshl_b32 {sT0}, {sG}, 3",f"s_lshl_b32 {sT1}, {sHB}, 2",f"s_add_u32 {sT1}, {sT1}, {sT0}",f"s_add_u32 {sT1}, {sT1}, {sW}",f"s_lshl_b32 {sRT2}, {sT1}, 14",f"s_lshl_b32 {sT1}, {sW}, 1",f"s_add_u32 {sT1}, {sT1}, {sT0}",f"s_lshl_b32 {sRT1}, {sT1}, 14")
e(f"v_lshrrev_b32 v{vG}, 4, v{vLANE}",f"v_and_b32 v17, 15, v{vLANE}",f"v_lshlrev_b32 v59, 10, v17",f"v_and_b32 v18, 1, v{vG}",f"v_lshl_add_u32 v59, v18, 5, v59",f"v_lshrrev_b32 v18, 1, v{vG}",f"v_lshl_add_u32 v59, v18, 4, v59",
  f"s_lshl_b32 {sT1}, {sCB}, 7",f"s_add_u32 s52, {sRT2}, {sT1}","s_waitcnt lgkmcnt(0)")
for u in range(2): e(f"buffer_load_dwordx4 {V(vRES+4*u,4)}, v59, {SX}, s52 offen offset:{u*64}")
e(f"v_lshrrev_b32 v{vR4}, 2, v{vLANE}",f"v_mul_u32_u24 v{vWQ}, 3072, v{vR4}",f"v_and_b32 v17, 1, v{vG}",f"v_lshlrev_b32 v17, 1, v17",f"v_xor_b32 v17, v17, v{vLANE}",f"v_and_b32 v17, 3, v17",f"v_lshl_add_u32 v{vWQ}, v17, 4, v{vWQ}",
  f"s_lshl_b32 {sT0}, {sJ}, 6",f"v_add_u32 v{vWQ}, {sT0}, v{vWQ}",f"s_mul_i32 s44, {sW}, {4*32*3072}",f"s_lshl_b32 s45, {sW}, 13")
wq=dma_wq(); NE=OPT.get("ne",12)
e(f"s_mov_b32 {sL}, 0")
if OPT["stamp"]:
    for i in range(30): e(f"s_mov_b32 s{64+i}, 0")
stamp()
e(*wq[:NE])
e(f"s_mov_b32 {sLB}, 0",f"s_mov_b32 {sPH}, 0",f"s_mov_b32 {sONE}, 0x3f803f80",f"s_lshl_b32 s46, {sW}, 17",f"s_lshl_b32 s47, {sW}, 14",f"s_mul_i32 s48, {sW}, {2*114688}",f"s_mul_i32 s49, {sW}, {2*7168}",f"s_mul_i32 s50, {sW}, {448*1024}",f"s_mul_i32 s51, {sW}, 40960")
e(f"v_lshlrev_b32 v{vL16}, 4, v{vLANE}",f"v_and_b32 v{vC8}, 3, v{vLANE}",f"v_lshlrev_b32 v{vC8}, 3, v{vC8}")
for i in range(4): e(f"v_mov_b32 v{vONES+i}, {sONE}")
e(f"s_lshl_b32 {sT0}, {sG}, 8",f"s_add_u32 {sT0}, {sT0}, {FL_OFF}",f"v_and_b32 v17, 15, v{vLANE}",f"v_lshl_add_u32 v{vFL}, v17, 2, {sT0}",
  f"s_cmp_eq_u32 {sG}, 0",f"s_cselect_b32 {sT1}, 0, 256",f"v_and_b32 v17, 1, v{vG}",f"v_mul_u32_u24 v17, {sT1}, v17",f"v_sub_u32 v{vFL2}, v{vFL}, v17")
e(f"s_lshl_b32 {sT1}, {sJ}, 2",f"s_add_u32 {sT0}, {sT0}, {sT1}",f"v_mov_b32 v18, {sT0}","v_mov_b32 v17, 0","s_mov_b64 exec, 1",f"buffer_store_dword v17, v18, {SWS}, 0 offen sc1","s_mov_b64 exec, -1")
e(f"v_lshrrev_b32 v{vWA}, 3, v{vLANE}",f"v_lshlrev_b32 v{vWA}, 10, v{vWA}",f"v_lshlrev_b32 v17, 1, v{vG}",f"v_xor_b32 v17, v17, v{vLANE}",f"v_and_b32 v17, 7, v17",f"v_lshl_add_u32 v{vWA}, v17, 4, v{vWA}",f"s_lshl_b32 {sT0}, {sCB}, 7",f"v_add_u32 v{vWA}, {sT0}, v{vWA}")
e(f"s_mul_i32 {sT0}, {sJ}, 224")
for q in range(7):
    e(f"v_add_u32 v17, {64*q}, v{vLANE}",f"v_mul_u32_u24 v18, 4682, v17",f"v_lshrrev_b32 v18, 16, v18",f"v_mul_u32_u24 v{52+q}, {3584-224}, v18",f"v_lshl_add_u32 v{52+q}, v17, 4, v{52+q}",f"v_add_u32 v{52+q}, {sT0}, v{52+q}")
e(f"v_and_b32 v17, 15, v{vLANE}",f"v_lshlrev_b32 v60, 3, v17",f"v_lshl_add_u32 v60, v{vG}, 8, v60")
e(f"s_waitcnt vmcnt({NE+1})")
for u in range(2):
    for i in range(2): e(f"v_permlane16_swap_b32 v{vRES+4*u+i}, v{vRES+4*u+2+i}")
xepi(None,XA_OFF,SA_OFF,0)
e(*wq[NE:])
e(f"s_waitcnt vmcnt({24-NE})","s_barrier",f"s_cmp_lg_u32 {sW}, 0","s_cbranch_scc1 Larr",f"s_lshl_b32 {sT0}, {sG}, 4",f"s_add_u32 {sT0}, {sT0}, {sJ}",f"v_mov_b32 v18, {sT0}","v_mov_b32 v17, 1","s_mov_b64 exec, 1",f"buffer_store_byte v17, v18, {SDBG}, 0 offen sc1","s_mov_b64 exec, -1","Larr:")
e("Llayer:")
XM,XH=0,128; ACC=64; WF=136; CS1,CS3=200,228; CV=200; STV=228
e(f"v_and_b32 v17, 1, v{vG}",f"v_lshl_add_u32 v18, v{vR4}, 6, v{vC8}",f"v_lshl_add_u32 v32, v17, 5, v18",f"v_xor_b32 v33, 32, v32",f"v_add_u32 v34, 0x10000, v32",f"v_add_u32 v35, 0x10000, v33",
  f"s_lshr_b32 {sT0}, {sW}, 1",f"s_add_u32 {sT0}, {sT0}, 1",f"s_lshl_b32 {sT0}, {sT0}, 15",f"s_and_b32 {sT1}, {sW}, 1",f"s_lshl_b32 {sT1}, {sT1}, 5",f"v_xor_b32 v36, {sT1}, v32",f"v_add_u32 v36, {sT0}, v36")
e(f"v_and_b32 v17, 15, v{vLANE}",f"v_lshlrev_b32 v18, 2, v{vG}","v_sub_u32 v17, v17, v18",f"s_mov_b32 {sT0}, 0xf149f2ca",f"v_mov_b32 v19, {sT0}",f"s_or_b32 {sT1}, {sG}, {sW}",f"s_cmp_eq_u32 {sT1}, 0",f"s_cselect_b32 {sT1}, {sT0}, 0")
for i in range(4):
    e(f"v_subrev_u32 v18, {i}, v17","v_and_b32 v37, 0x80000001, v18","v_cmp_eq_u32 vcc, 0, v37",f"v_cndmask_b32_e64 v{40+i}, v19, 0, vcc",
      "v_cmp_eq_u32 vcc, 0x80000000, v37",f"v_cndmask_b32_e64 v{44+i}, v19, 0, vcc",f"v_add_f32 v{48+i}, {sT1}, v{44+i}")
e(f"s_add_u32 {sT1}, {sRT1}, {sLB}",f"s_add_u32 {sT1}, {sT1}, {XA_OFF}",f"v_add_u32 v24, {sT1}, v{vL16}","v_add_u32 v25, 0x4000, v24",
  f"s_lshr_b32 {sT1}, {sRT1}, 4",f"s_add_u32 {sT1}, {sT1}, {sLB}",f"s_add_u32 {sT1}, {sT1}, {SA_OFF}",f"v_add_u32 v27, {sT1}, v60",
  f"s_lshl_b32 {sT0}, {sG}, 17",f"s_add_u32 {sT1}, {sLB}, {XA_OFF-16384}",f"s_add_u32 {sT1}, {sT1}, {sT0}",f"s_lshr_b32 {sT0}, {sT0}, 4",f"s_add_u32 {sT0}, {sT0}, {sLB}",f"s_add_u32 {sT0}, {sT0}, {SA_OFF-1024}",
  f"s_cmp_eq_u32 {sG}, 0",f"s_cselect_b32 {sT1}, 0xffff0000, {sT1}",f"s_cselect_b32 {sT0}, 0xffff0000, {sT0}",f"v_add_u32 v26, {sT1}, v{vL16}",f"v_add_u32 v37, {sT0}, v60")
def p1_reads(s):
    b=WF+28*(s&1)
    return [tr(V(b+4*t+2*ee,2),ad,po+s*2048+ee*1024) for t,(ad,po) in enumerate(((32,0),(33,0),(32,32768),(33,32768),(34,0),(35,0),(36,0))) for ee in range(2)]
e("s_waitcnt vmcnt(0)","s_barrier")
stamp()
colsum(p1_reads,lambda s,t:V(WF+28*(s&1)+4*t,4),CS1,"Lcs1")
for i in range(28): e(f"v_accvgpr_read_b32 v{CV+i}, a{CS1+i}")
e(*p1_reads(0))
e(f"s_cmp_lg_u32 {sL}, 0","s_cbranch_scc1 Lp1b",f"s_lshl_b32 {sT0}, {sG}, 4",f"s_cmp_eq_u32 {sG}, 0",f"s_cselect_b32 {sT1}, 0, 16",f"v_and_b32 v18, 1, v{vG}",f"v_mul_u32_u24 v18, {sT1}, v18",f"v_sub_u32 v18, {sT0}, v18",f"v_lshrrev_b32 v19, 1, v{vC8}","v_add_u32 v18, v18, v19",f"s_mov_b32 {sT1}, 0x01010101")
poll(18,SDBG,sT1)
e("s_branch Lp1c","Lp1b:")
poll(vFL2)
e("Lp1c:")
stamp()
class Q:
    def __init__(s): s.q=[]
    def add(s,tag,ins): s.q.append(tag); return ins
    def wait(s,tag): return len(s.q)-1-max(i for i,t in enumerate(s.q) if t==tag)
def xl(dst,ad,s): return (f"s_movk_i32 {sT4}, {(s>>2)*4096}\n" if s>=4 else "")+f"buffer_load_dwordx4 {dst}, v{ad}, {SWS}, {sT4 if s>=4 else 0} offen offset:{(s&3)*1024} sc1"
def stl(dst,ad,o): return [f"buffer_load_dwordx2 {V(dst+2*k,2)}, v{ad}, {SWS}, 0 offen offset:{o+128*k} sc1" for k in range(2)]
LA1=OPT.get("la1",4); q=Q()
p1x=lambda s:[q.add(s,xl(A(r,4),ad,s)) for r,ad in ((XM+4*s,24),(XM+64+4*s,25),(XH+4*s,26))] if s<16 else []
for s in range(LA1): e(*p1x(s))
wo=dma_wo()
for s in range(16):
    b=WF+28*(s&1)
    e(f"s_waitcnt vmcnt({q.wait(s)}) lgkmcnt(0)")
    mm=[mfma(V(ACC+24*m+4*t,4),V(b+4*t,4),A(XM+64*m+4*s,4),V(ACC+24*m+4*t,4) if s else "0") for t in range(6) for m in range(2)]
    mm.append(mfma(V(ACC+48,4),V(b+24,4),A(XH+4*s,4),V(ACC+48,4) if s else "0"))
    ld=p1x(s+LA1)
    if s+LA1==16: ld=[q.add("st",x) for x in stl(STV,27,0)+stl(STV+4,27,1024)+stl(STV+8,37,0)]
    if s>=12 and s+LA1!=16: ld+=[q.add("wo",x) for x in wo[:6]]; wo=wo[6:]
    e(*merge(mm,p1_reads(s+1) if s<15 else [],ld))
assert not wo
stamp()
e(f"s_waitcnt vmcnt({q.wait('st')})")
for m in range(3): stats(STV+4*m,STV+4*m+1,17)
e("s_barrier")
PK=120; XB=79872
n0=len(L)
def scale_tile(acc,cs,st,dst):
    e(pkfma(acc,cs,st),pkfma(acc+2,cs+2,st),pkmul(acc,acc,st,1),pkmul(acc+2,acc+2,st,1),f"v_cvt_pk_bf16_f32 v{dst}, v{acc}, v{acc+1}",f"v_cvt_pk_bf16_f32 v{dst+1}, v{acc+2}, v{acc+3}")
e(f"s_lshl_b32 {sT0}, {sW}, 11",f"s_add_u32 {sT0}, {sT0}, {XB}",f"v_lshl_add_u32 v32, v{vLANE}, 3, {sT0}",f"v_and_b32 v17, 15, v{vLANE}",f"v_lshlrev_b32 v17, 5, v17",f"v_lshl_add_u32 v17, v{vG}, 3, v17",f"v_add_u32 v33, {sT0}, v17",
  f"v_lshl_add_u32 v34, v{vR4}, 5, v{vC8}",f"v_add_u32 v34, {sT0}, v34",
  f"v_add_u32 v17, 9216, v17",f"v_lshlrev_b32 v35, 3, v{vLANE}",f"s_cmp_ge_u32 {sW}, 2","s_cselect_b64 vcc, -1, 0",f"s_and_b32 {sT0}, {sW}, 1",f"s_lshl_b32 {sT0}, {sT0}, 9","v_cndmask_b32 v35, v35, v17, vcc",f"s_add_u32 {sT0}, {sT0}, {XB}",f"v_add_u32 v35, {sT0}, v35")
scale_tile(ACC+48,CV+24,STV+8,PK+24); e(f"ds_write_b64 v35, {V(PK+24,2)}")
for m in (1,0):
    for t in (2,3,4,5):
        scale_tile(ACC+24*m+4*t,CV+4*t,STV+4*m,PK+12*m+2*t)
        if t>=4: e(f"ds_write_b64 v33, {V(PK+12*m+2*t,2)} offset:{9216+((m+1)*2+t-4)*512}")
        elif m==1: e(f"ds_write_b64 v32, {V(PK+12*m+2*t,2)} offset:{(4+t-2)*512}")
e("s_waitcnt lgkmcnt(0)","s_barrier")
KP=148; VF=152
for h in range(2):
    e(f"ds_read_b64 {V(KP+2*h,2)}, v32 offset:{h*512}")
    for k in range(3): e(tr(V(VF+8*h+2*k,2),34,9216+(k*2+h)*512))
for m in range(2):
    for t in range(2): scale_tile(ACC+24*m+4*t,CV+4*t,STV+4*m,PK+12*m+2*t)
U=[(m,h) for m in range(2) for h in range(2)]
S=lambda u:168+16*u
def mf16(d,a,b,c): return f"v_mfma_f32_16x16x16_bf16 {d}, {a}, {b}, {c}"
for u,(m,h) in enumerate(U): e(mf16(V(S(u)+4,4),V(PK+12*m+4+2*h,2),V(PK+12*m+2*h,2),V(40,4)))
e("s_waitcnt lgkmcnt(0)")
for u,(m,h) in list(enumerate(U))[::-1]: e(mf16(V(S(u),4),V(KP+2*h,2) if m==0 else V(PK+4+2*h,2),V(PK+12*m+2*h,2),V(48 if m==0 else 44,4)))
def steps(f):
    for u in (3,2,1,0): e(*f(S(u),u))
steps(lambda s,u:[f"v_max3_f32 v{s+8}, v{s+4}, v{s+5}, v{s+6}",f"v_max3_f32 v{s+9}, v{s+7}, v{s}, v{s+1}"])
steps(lambda s,u:[f"v_max3_f32 v{s+8}, v{s+8}, v{s+2}, v{s+3}"])
steps(lambda s,u:[f"v_max_f32 v{s+8}, v{s+8}, v{s+9}"])
for sw in (16,32):
    steps(lambda s,u:[f"v_mov_b32 v{s+9}, v{s+8}"])
    steps(lambda s,u:[f"v_permlane{sw}_swap_b32 v{s+8}, v{s+9}"])
    steps(lambda s,u:[f"v_max_f32 v{s+8}, v{s+8}, v{s+9}"])
e(f"v_mov_b32 v20, 0x3eb8aa3b")
steps(lambda s,u:[f"v_mul_f32 v{s+8}, v20, v{s+8}"])
steps(lambda s,u:[f"v_pk_fma_f32 {V(s+2*i,2)}, {V(s+2*i,2)}, v[20:21], {V(s+8,2)} op_sel_hi:[1,0,0] neg_lo:[0,0,1] neg_hi:[0,0,1]" for i in range(4)]+[f"v_exp_f32 v{s+i}, v{s+i}" for i in range(8)])
steps(lambda s,u:[f"v_cvt_pk_bf16_f32 v{s+12+i}, v{s+2*i}, v{s+2*i+1}" for i in range(4)])
steps(lambda s,u:[mfma(V(s,4),V(VF+8*U[u][1]+2*U[u][0],4),V(s+12,4),"0"),mfma(V(s+4,4),V(vONES,4),V(s+12,4),"0")])
steps(lambda s,u:[f"v_rcp_f32 v{s+4}, v{s+4}"])
steps(lambda s,u:[pkmul(s+2*i,s+2*i,s+4,0) for i in range(2)])
steps(lambda s,u:[f"v_cvt_pk_bf16_f32 v{96+4*U[u][0]+2*U[u][1]+i}, v{s+2*i}, v{s+2*i+1}" for i in range(2)])
body=L[n0:]; del L[n0:]; e(*spread(body,dma_w1(0),0.0,0.7))
e(f"s_lshl_b32 {sT1}, {sJ}, 10",f"s_add_u32 {sT0}, {sRT1}, {sT1}",f"s_add_u32 {sT0}, {sT0}, {sLB}",f"s_add_u32 {sT1}, {sT0}, 0x4000")
e(f"buffer_store_dwordx4 {V(100,4)}, v{vL16}, {SWS}, {sT1} offen sc1",f"buffer_store_dwordx4 {V(96,4)}, v{vL16}, {SWS}, {sT0} offen sc1")
stamp()
signal()
e(f"s_mov_b32 {sT2}, 98304"); rd128(sT2,32)
e(f"s_add_u32 {sT0}, {sRT2}, {sLB}",f"v_add_u32 v24, {sT0}, v{vL16}")
def rd4(b,off): return [tr(A(b+4*t+2*ee,2),32+t,off+ee*2048) for t in range(4) for ee in range(2)]
NP=6
for s in range(NP): e(*rd4(64+16*s,s*4096))
poll(vFL)
stamp()
for s in range(16): e(xl(A(4*s,4),24,s))
for s in range(16):
    b=64+16*(s%NP)
    e(f"s_waitcnt vmcnt({15-s}) lgkmcnt({min(15,8*min(NP-1,15-s)) if s else 0})")
    e(*[mfma(V(64+4*t,4),A(b+4*t,4),A(4*s,4),V(64+4*t,4) if s else "0") for t in range(4)])
    if s+NP<16: e(*rd4(b,(s+NP)*4096))
stamp()
xepi(64,X1_OFF,S1_OFF,0)
signal()
e(*dma_w1(1))
e(f"v_mul_u32_u24 v32, 224, v{vR4}",f"v_add_u32 v32, v32, v{vC8}",f"v_add_u32 v33, 57344, v32")
e(f"s_add_u32 {sT1}, {sRT1}, {sLB}",f"s_add_u32 {sT1}, {sT1}, {X1_OFF}",f"v_add_u32 v24, {sT1}, v{vL16}","v_add_u32 v25, 0x4000, v24",
  f"s_lshr_b32 {sT1}, {sRT1}, 4",f"s_add_u32 {sT1}, {sT1}, {sLB}",f"s_add_u32 {sT1}, {sT1}, {S1_OFF}",f"v_add_u32 v27, {sT1}, v60")
def p3_reads(s):
    b=WF+28*(s&1)
    return [tr(V(b+4*t+2*ee,2),32+(s>>3),(s&7)*7168+ee*3584+32*t) for t in range(7) for ee in range(2)]
e("s_waitcnt vmcnt(0)","s_barrier")
colsum(p3_reads,lambda s,t:V(WF+28*(s&1)+4*t,4),CS3,"Lcs3")
for i in range(28): e(f"v_accvgpr_read_b32 v{CV+i}, a{CS3+i}")
e(*p3_reads(0))
poll(vFL)
stamp()
LA3=OPT.get("la3",5); q=Q(); AC=64
p3x=lambda s:[q.add(s,xl(A(64*m+4*s,4),24+m,s)) for m in range(2)] if s<16 else []
for s in range(LA3): e(*p3x(s))
for s in range(16):
    b=WF+28*(s&1)
    e(f"s_waitcnt vmcnt({q.wait(s)}) lgkmcnt(0)")
    mm=[mfma(V(AC+28*m+4*t,4),V(b+4*t,4),A(64*m+4*s,4),V(AC+28*m+4*t,4) if s else "0") for t in range(7) for m in range(2)]
    ld=p3x(s+LA3)
    if s+LA3==16: ld=[q.add("st",x) for x in stl(STV,27,0)+stl(STV+4,27,1024)]
    e(*merge(mm,p3_reads(s+1) if s<15 else [],ld))
stamp()
e("s_waitcnt vmcnt(0)","s_barrier")
n0=len(L)
for m in range(2):
    stats(STV+4*m,STV+4*m+1,17); e(f"v_mul_f32 v{STV+4*m+2}, 0xbfb8aa3b, v{STV+4*m+1}")
e(f"s_lshr_b32 {sT0}, {sRT1}, 14",f"s_mul_i32 {sT0}, {sT0}, 57344",f"s_mul_i32 {sT1}, {sJ}, 3584",f"s_add_u32 {sT0}, {sT0}, {sT1}",f"s_add_u32 {sT0}, {sT0}, {sLB}",f"s_add_u32 {sT0}, {sT0}, {H_OFF}",f"v_lshlrev_b32 v34, 3, v{vLANE}")
for m in range(2):
    st=STV+4*m
    for t0 in (0,2,4,6):
        n=8 if t0<6 else 4; a=AC+28*m+4*t0; c=CV+4*t0; tm=160; pk=120+16*m+2*t0
        for i in range(0,n,2): e(pkfma(a+i,c+i,st))
        for i in range(0,n,2): e(pkmul(tm+i,a+i,st+2,0))
        for i in range(0,n,2): e(f"v_exp_f32 v{tm+i}, v{tm+i}",f"v_exp_f32 v{tm+i+1}, v{tm+i+1}",pkmul(a+i,a+i,st,1))
        for i in range(0,n,2): e(f"v_pk_add_f32 {V(tm+i,2)}, {V(tm+i,2)}, 1.0 op_sel_hi:[1,0]")
        for i in range(n): e(f"v_rcp_f32 v{tm+i}, v{tm+i}")
        for i in range(0,n,2): e(f"v_pk_mul_f32 {V(a+i,2)}, {V(a+i,2)}, {V(tm+i,2)}")
        for i in range(n//2): e(f"v_cvt_pk_bf16_f32 v{pk+i}, v{a+2*i}, v{a+2*i+1}")
        if t0<6: e(f"buffer_store_dwordx4 {V(pk,4)}, v{vL16}, {SWS}, {sT0} offen offset:{t0*512} sc1")
        else: e(f"buffer_store_dwordx2 {V(pk,2)}, v34, {SWS}, {sT0} offen offset:3072 sc1")
    if m==0: e(f"s_add_u32 {sT0}, {sT0}, 57344")
w2=dma_w2(range(10)); N2=OPT.get("n2",24)
body=L[n0:]; del L[n0:]; e(*spread(body,w2[:N2],0.0,0.75))
stamp()
signal()
e(*w2[N2:])
rd128("s51",32)
PRE=128
def rd4v(b,off): return [tr(V(b+4*t+2*ee,2),32+t,off+ee*2048) for t in range(4) for ee in range(2)]
for s in range(4): e(*rd4v(PRE+16*s,s*4096))
e(f"s_lshr_b32 {sT0}, {sRT2}, 14",f"s_sub_u32 {sT0}, {sT0}, {sW}",f"s_mul_i32 {sT0}, {sT0}, 57344",f"s_mul_i32 {sT1}, {sW}, 14336",f"s_add_u32 {sT0}, {sT0}, {sT1}",f"s_add_u32 {sT0}, {sT0}, {sLB}",f"s_add_u32 {sT0}, {sT0}, {H_OFF}",
  f"v_add_u32 v36, {sT0}, v{vL16}",f"v_lshl_add_u32 v37, v{vLANE}, 3, {sT0}")
e("s_waitcnt lgkmcnt(0)")
e(*dma_w2(range(10,14)))
poll(vFL)
stamp()
def af(s,i,c=4,o=0):
    k=(s*4+i)*4
    return A(k+o,c) if k<200 else V(192+k-200+o,c)
q=Q(); LA4=OPT.get("la4",4)
def p4x(s):
    o=[]
    for i in range(4 if s<14 else 0):
        if s<12:
            jj,u=divmod(s,3); o.append(q.add(s,f"s_mov_b32 {sT4}, {i*57344+jj*3584}\nbuffer_load_dwordx4 {af(s,i)}, v36, {SWS}, {sT4} offen offset:{u*1024} sc1"))
        else:
            for ee in range(2):
                jj=(s-12)*2+ee; o.append(q.add(s,f"s_mov_b32 {sT4}, {i*57344+jj*3584}\nbuffer_load_dwordx2 {af(s,i,2,2*ee)}, v37, {SWS}, {sT4} offen offset:3072 sc1"))
    return o
for s in range(LA4): e(*p4x(s))
WB=lambda s: PRE+16*s if s<4 else (232 if s&1 else 216)
for s in range(14):
    e(f"s_waitcnt vmcnt({q.wait(s)}) lgkmcnt(0)")
    mm=[mfma(V(64+16*i+4*t,4),V(WB(s)+4*t,4),af(s,i),V(64+16*i+4*t,4) if s else "0") for i in range(4) for t in range(4)]
    e(*merge(mm,rd4v(WB(s+1),((s+1)%10)*4096) if 3<=s<13 else [],p4x(s+LA4)))
stamp()
e(f"s_add_u32 {sT0}, s47, 98304",f"v_add_u32 v17, {sT0}, v{vL16}","s_barrier","s_nop 4")
n0=len(L)
for i in range(16): e(f"ds_write_b128 v17, {V(64+4*i,4)} offset:{i*1024}")
e(f"s_lshl_b32 {sT0}, {sW}, 12",f"s_add_u32 {sT0}, {sT0}, 98304",f"v_add_u32 v17, {sT0}, v{vL16}","s_waitcnt lgkmcnt(0)","s_barrier")
for w in range(4):
    for t in range(4): e(f"ds_read_b128 {V(128+16*w+4*t,4)}, v17 offset:{w*16384+t*1024}")
e("s_waitcnt lgkmcnt(8)")
for i in range(8): e(f"v_pk_add_f32 {V(128+2*i,2)}, {V(128+2*i,2)}, {V(144+2*i,2)}")
e("s_waitcnt lgkmcnt(0)")
for i in range(8): e(f"v_pk_add_f32 {V(160+2*i,2)}, {V(160+2*i,2)}, {V(176+2*i,2)}")
for i in range(8): e(f"v_pk_add_f32 {V(128+2*i,2)}, {V(128+2*i,2)}, {V(160+2*i,2)}")
red=L[n0:]; del L[n0:]
e(f"s_cmp_lg_u32 {sL}, 0","s_cbranch_scc1 Lout")
N1=OPT.get("n1",8)
e(*spread(red,wq[:N1],0.0,0.4))
xepi(128,XA_OFF,SA_OFF,16*MB)
stamp()
e(*wq[N1:N1+4]); signal(4); e(*wq[N1+4:])
e(f"s_mov_b32 {sL}, 1",f"s_mov_b32 {sLB}, {16*MB}","s_branch Llayer")
e("Lout:")
e(*red)
xepi(128,0,0,0,False)
for u in range(2):
    for i in range(2): e(f"v_permlane16_swap_b32 v{vRES+4*u+i}, v{vRES+4*u+2+i}")
for u in range(2): e(f"buffer_store_dwordx4 {V(vRES+4*u,4)}, v59, {SOUT}, s52 offen offset:{u*64}")
e("Lfin:","s_waitcnt vmcnt(0)")
if OPT["stamp"]:
    stamp()
    e(f"s_cmp_lg_u32 {sW}, 0","s_cbranch_scc1 Lend",f"s_lshl_b32 {sT0}, {sB}, 7",f"s_add_u32 {sT0}, {sT0}, {ST_OFF}","s_mov_b64 exec, 1","v_mov_b32 v18, 0")
    for i in range(30): e(f"v_mov_b32 v17, s{64+i}",f"buffer_store_dword v17, v18, {SWS}, {sT0} offen offset:{4*i}")
e("Lend:","s_endpgm")
K=NAME+"_kernel"
hdr=f"""; @launch grid=(256,1,1) block=(256,1,1) lds=163840
.amdgcn_target "amdgcn-amd-amdhsa--gfx950"
.text
.globl {K}
.p2align 8
.type {K},@function
{K}:
"""
ftr=f"""
.section .rodata,"a"
.p2align 6
.amdhsa_kernel {K}
  .amdhsa_next_free_vgpr 512
  .amdhsa_next_free_sgpr 102
  .amdhsa_accum_offset 256
  .amdhsa_group_segment_fixed_size 0
  .amdhsa_kernarg_size 72
  .amdhsa_user_sgpr_count 2
  .amdhsa_user_sgpr_kernarg_segment_ptr 1
  .amdhsa_system_sgpr_workgroup_id_x 1
.end_amdhsa_kernel
"""
open(sys.argv[1],"w").write(hdr+"\n".join(fix(L))+ftr)
print("stamps",nst[0],"lines",len(L))
```

```python
import sys
from asmlib import fix
NAME="interleave_layers__sliding_local_dilated__dense_activation_silu__prompt"
OPT=dict(stamp=0, stop=99, nodot=0)
for a in sys.argv[2:]:
    k,v=a.split("="); OPT[k]=int(v)
L=[]
def e(*x):
    for t in x:
        for u in t.split("\n"):
            u=u.strip()
            if u: L.append(u)
def V(n,c=1): return f"v{n}" if c==1 else f"v[{n}:{n+c-1}]"
def A(n,c=1): return f"a{n}" if c==1 else f"a[{n}:{n+c-1}]"
def merge(main,*fill):
    out=[]; n=len(main); pos=[0]*len(fill)
    for i,m in enumerate(main):
        out.append(m)
        for k,f in enumerate(fill):
            tgt=(len(f)*(i+1)+n-1)//n
            while pos[k]<min(tgt,len(f)): out.append(f[pos[k]]); pos[k]+=1
    return out
MB=1<<20
O_OFF,X1_OFF,H_OFF,XA_OFF,SA_OFF,S1_OFF,FL_OFF,ST_OFF=0,2*MB,4*MB,12*MB,14*MB,14*MB+262144,40*MB,41*MB
SX,SWQ,SWO,SW1,SW2,SWS,SOUT,SDBG="s[4:7]","s[8:11]","s[12:15]","s[16:19]","s[20:23]","s[24:27]","s[28:31]","s[32:35]"
sG,sJ,sW,sL="s36","s37","s38","s39"
sKS=40
sES,sT0,sT1,sT2,sLB,sPH,sHB,sCB="s56","s57","s58","s59","s60","s61","s62","s63"
sB="s96"; sONE="s97"; sTO="s98"
vLANE,vL16,vRES,vX1,vWQ,vFL,vFL2=0,1,2,10,11,12,13
vR4,vG,vC8=14,15,16
vONES=28
nst=[0]; skip=0
def stamp(x=False):
    global skip
    skip+=1
    if OPT.get('st4') and skip in (2,7,8,9,14): return
    if OPT["stamp"]:
        i=nst[0]; nst[0]+=1
        if i>=15: return
        e("s_memtime s[94:95]" if OPT.get("clk") else "s_memrealtime s[94:95]","s_waitcnt lgkmcnt(0)",f"s_cmp_eq_u32 {sL}, 0",f"s_cselect_b32 s{64+i}, s94, s{64+i}",f"s_cselect_b32 s{79+i}, s{79+i}, s94")
def signal(n=0,rb=(),st=True):
    lab=f"Lsig{len(L)}"
    e(f"s_waitcnt vmcnt({n})")
    if OPT.get("st3") and st: stamp()
    e("s_barrier",f"s_add_u32 {sPH}, {sPH}, 1",f"s_cmp_lg_u32 {sW}, 0",f"s_cbranch_scc1 {lab}",
      f"s_or_b32 {sT0}, s44, {sPH}",f"v_mov_b32 v22, {sT0}","v_mov_b32 v23, s45","s_mov_b64 exec, 1",f"s_lshl_b32 {sT1}, {sJ}, 3",f"buffer_store_dwordx2 v[22:23], v{vFL}, {SWS}, {sT1} offen sc1","s_mov_b64 exec, -1",f"{lab}:")
def poll(vaddr,n=1):
    lab=f"Lpoll{len(L)}"
    e(f"s_cmp_lg_u32 {sW}, 0",f"s_cbranch_scc1 {lab}x",f"s_mov_b32 {sTO}, 0x40000",f"s_or_b32 {sT0}, s44, {sPH}",f"s_sub_u32 {sT1}, 16, {sPH}",f"{lab}:")
    if n==4: e(f"buffer_load_dwordx4 v[248:251], v{vaddr}, {SWS}, 0 offen sc1",f"buffer_load_dwordx4 v[252:255], v{vaddr}, {SWS}, 0 offen offset:16 sc1")
    else: e(f"buffer_load_dwordx2 v[248:249], v{vaddr}, {SWS}, 0 offen sc1")
    e(f"s_sub_u32 {sTO}, {sTO}, 1","s_cbranch_scc1 Lend","s_waitcnt vmcnt(0)")
    for k in range(n):
        e(f"v_subrev_u32 v{248+2*k}, {sT0}, v{248+2*k}",f"v_xor_b32 v{249+2*k}, s45, v{249+2*k}")
        if k: e(f"v_max_u32 v248, v248, v{248+2*k}",f"v_or_b32 v249, v249, v{249+2*k}")
    e(f"v_cmp_gt_u32 vcc, {sT1}, v248","v_cmp_eq_u32 s[2:3], 0, v249","s_and_b64 vcc, vcc, s[2:3]","s_cmp_eq_u64 vcc, exec",f"s_cbranch_scc0 {lab}",f"{lab}x:","s_waitcnt vmcnt(0)","s_barrier")
def dma(vo,srd,so): e(f"buffer_load_dwordx4 v{vo}, {srd}, {so} offen lds")
def xsum(r,t,op="v_add_f32"):
    e(f"v_mov_b32 v{t}, v{r}",f"v_permlane16_swap_b32 v{r}, v{t}",f"{op} v{r}, v{r}, v{t}",f"v_mov_b32 v{t}, v{r}",f"v_permlane32_swap_b32 v{r}, v{t}",f"{op} v{r}, v{r}, v{t}")
def stats(su,sq,t):
    e(f"v_add_f32 v{su}, v{su}, v{su+2}",f"v_add_f32 v{sq}, v{sq}, v{sq+2}")
    xsum(su,t); xsum(sq,t)
    e(f"v_mul_f32 v{su}, 0x3b000000, v{su}",f"v_mul_f32 v{sq}, 0x3b000000, v{sq}",f"v_fma_f32 v{sq}, -v{su}, v{su}, v{sq}",f"v_max_f32 v{sq}, 0, v{sq}",
      f"v_add_f32 v{sq}, 0x3727c5ac, v{sq}",f"v_rsq_f32 v{sq}, v{sq}")
def mfma(d,a,b,c): return f"v_mfma_f32_16x16x32_bf16 {d}, {a}, {b}, {c}"
def tr(d,ad,off): return f"ds_read_b64_tr_b16 {d}, v{ad} offset:{off}"

sT3,sT4="s40","s41"
sRT2,sRT1="s42","s43"
vWA=10
def D(m0,so,vo,srd): return f"{m0}\n{so}\nbuffer_load_dwordx4 v{vo}, {srd}, {sT3} offen lds"
def dma_wq():
    return [D(f"s_add_u32 m0, s54, {p*32768+s*2048+ee*1024}",f"s_add_u32 {sT3}, s53, {(32*s+16*ee)*3072+p*1024}",vWQ,SWQ) for s in range(4) for ee in range(2) for p in range(3)]
PQ,PO,P1W,P2W=44*MB,46*MB,47*MB,50*MB
def PD(ldsb,lds,srcb,src,n):
    o=[]
    for i in range(n):
        pre=f"s_add_u32 m0, {ldsb}, {lds+i*1024}\ns_add_u32 {sT3}, {srcb}, {src+i*1024}\n" if i%4==0 else ""
        o.append(pre+f"buffer_load_dwordx4 v{vL16}, {SWS}, {sT3} offen offset:{(i%4)*1024} sc1 lds")
    return o
def dma_wo(): return PD("s47",98304,"s46",0,16)
def dma_w1(k): return PD("s49",k*28672,"s48",k*28672,7)
SLOT={0:7,1:8,2:9,3:7,11:8,12:9,13:7,**{4+k:k for k in range(7)}}
def dma_w2(steps): return [x for st in steps for x in PD("s51",SLOT[st]*16384,"s50",st*4096,4)]
def dma_wq2(k): return PD("s51",k*16384,"s55",k*16384,4)
def rd128(base,v0):
    e(f"v_lshrrev_b32 v17, 1, v{vR4}",f"v_and_b32 v17, 3, v17",f"v_lshl_add_u32 v18, v{vR4}, 7, v{vC8}",f"v_add_u32 v18, {base}, v18")
    for t in range(4): e(f"v_xor_b32 v{v0+t}, {t}, v17",f"v_lshl_add_u32 v{v0+t}, v{v0+t}, 5, v18")
def cap(f,*a):
    n=len(L); f(*a); r=L[n:]; del L[n:]; return r
def spread(main,fill,lo=0.0,hi=1.0):
    m2=[]
    for x in main:
        if m2 and m2[-1].split("\n")[-1].startswith("s_cmp"): m2[-1]+="\n"+x
        else: m2.append(x)
    main=m2
    n=len(main); a=int(n*lo); b=max(a+1,int(n*hi)); return main[:a]+merge(main[a:b],fill)+main[b:]
def pkfma(a,c,mean): return f"v_pk_fma_f32 {V(a,2)}, {V(mean,2)}, {V(c,2)}, {V(a,2)} op_sel_hi:[0,1,1] neg_lo:[1,0,0] neg_hi:[1,0,0]"
def pkmul(d,a,pair,hi): return f"v_pk_mul_f32 {V(d,2)}, {V(a,2)}, {V(pair,2)} "+("op_sel:[0,1] op_sel_hi:[1,1]" if hi else "op_sel_hi:[1,0]")
def xepi(acc,xoff,soff,nxt,st=True):
    for k in range(8):
        r=vRES+k
        e(f"v_lshlrev_b32 v{96+2*k}, 16, v{r}",f"v_and_b32 v{97+2*k}, 0xffff0000, v{r}")
        if acc is not None: e(f"v_pk_add_f32 {V(96+2*k,2)}, {V(96+2*k,2)}, {V(acc+2*k,2)}",f"v_cvt_pk_bf16_f32 v{r}, v{96+2*k}, v{97+2*k}")
    if not st: return
    e(f"s_lshl_b32 {sT1}, {sCB}, 11",f"s_add_u32 {sT1}, {sT1}, {sRT2}",f"s_add_u32 {sT1}, {sT1}, {sLB}",f"s_add_u32 s53, {sT1}, {xoff+nxt}")
    for u in range(2): e(f"buffer_store_dwordx4 {V(vRES+4*u,4)}, v{vL16}, {SWS}, s53 offen offset:{u*1024} sc1")
    e(f"v_pk_mul_f32 v[20:21], v[96:97], v[96:97]")
    for k in range(1,8): e(f"v_pk_fma_f32 v[20:21], {V(96+2*k,2)}, {V(96+2*k,2)}, v[20:21]",f"v_pk_add_f32 v[96:97], v[96:97], {V(96+2*k,2)}")
    e("v_add_f32 v21, v20, v21","v_add_f32 v20, v96, v97")
    xsum(20,17); xsum(21,18)
    e(f"s_lshr_b32 {sT1}, {sRT2}, 4",f"s_lshl_b32 {sT0}, {sCB}, 7",f"s_add_u32 {sT1}, {sT1}, {sT0}",f"s_add_u32 {sT1}, {sT1}, {sLB}",f"s_add_u32 s54, {sT1}, {soff+nxt}",f"v_lshlrev_b32 v17, 3, v{vLANE}",
      "s_mov_b64 exec, 0xffff",f"buffer_store_dwordx2 v[20:21], v17, {SWS}, s54 offen sc1","s_mov_b64 exec, -1")
XRB=[f"buffer_load_dwordx4 v[248:251], v{vL16}, {SWS}, s53 offen offset:{u*1024} sc1" for u in range(2)]+[f"v_and_b32 v17, 0x70, v{vL16}",f"buffer_load_dwordx4 v[248:251], v17, {SWS}, s54 offen sc1"]
def colsum(reads,bufreg,cs,lab,post=None,mid=None,pre=None):
    e(f"s_cmp_lg_u32 {sL}, 0",f"s_cbranch_scc1 {lab}")
    if pre: pre()
    e(*reads(0))
    for s in range(16):
        if mid and s==11: mid()
        pstep([[mfma(A(cs+4*t,4),bufreg(s,t),V(vONES,4),A(cs+4*t,4) if s else "0")] for t in range(7)],reads(s+1) if s<15 else [],[],s==0,63,0)
    if post: post()
    e("s_nop 7",f"{lab}:")

def pstep(groups,nxt,ld,first,vm,later):
    nt=len(groups); out=[]; k=0
    for t,g in enumerate(groups):
        if first: w=f"s_waitcnt vmcnt({vm}) lgkmcnt(0)" if t==0 else None
        else:
            n=2*(nt-1-t)+(2*t if nxt else 0)
            w=(f"s_waitcnt vmcnt({vm}) lgkmcnt({n})" if t==0 else f"s_waitcnt lgkmcnt({n})")
        if w: out.append(w)
        if t==0 and later and OPT.get("st4"): out+=cap(stamp,True); out.append("s_nop 0")
        r=nxt[2*t:2*t+2] if nxt else []
        tgt=(len(ld)*(t+1)+nt-1)//nt; l=ld[k:tgt]; k=max(k,tgt)
        out+=merge(g,r,l)
    e(*out)
e(f"s_cmp_ge_u32 s2, 256","s_cbranch_scc1 Lend",f"s_mov_b32 {sB}, s2")
e("s_load_dwordx2 s[4:5], s[0:1], 0","s_load_dwordx2 s[8:9], s[0:1], 8","s_load_dwordx2 s[12:13], s[0:1], 16","s_load_dwordx2 s[16:17], s[0:1], 32","s_load_dwordx2 s[20:21], s[0:1], 40",
  "s_load_dwordx2 s[24:25], s[0:1], 64","s_load_dwordx2 s[28:29], s[0:1], 48","s_load_dwordx2 s[32:33], s[0:1], 56")
for b,n in ((4,2*MB),(8,512*3072),(12,512*1024),(16,512*3584),(20,1792*1024),(24,64*MB),(28,2*MB),(32,256)):
    e(f"s_mov_b32 s{b+2}, {n}",f"s_mov_b32 s{b+3}, 0x20000")
e(f"v_lshrrev_b32 v17, 6, v0",f"v_and_b32 v{vLANE}, 63, v0",f"v_readfirstlane_b32 {sW}, v17",
  f"s_and_b32 {sT0}, s2, 7",f"s_lshr_b32 {sT1}, s2, 3",f"s_and_b32 {sJ}, {sT1}, 15",f"s_lshr_b32 {sT1}, {sT1}, 4",f"s_lshl_b32 {sG}, {sT0}, 1",f"s_add_u32 {sG}, {sG}, {sT1}",
  f"s_lshr_b32 {sHB}, {sJ}, 3",f"s_and_b32 {sCB}, {sJ}, 7",
  f"s_lshl_b32 {sT0}, {sG}, 3",f"s_lshl_b32 {sT1}, {sHB}, 2",f"s_add_u32 {sT1}, {sT1}, {sT0}",f"s_add_u32 {sT1}, {sT1}, {sW}",f"s_lshl_b32 {sRT2}, {sT1}, 14",f"s_lshl_b32 {sT1}, {sW}, 1",f"s_add_u32 {sT1}, {sT1}, {sT0}",f"s_lshl_b32 {sRT1}, {sT1}, 14")
e(f"v_lshrrev_b32 v{vG}, 4, v{vLANE}",f"v_and_b32 v17, 15, v{vLANE}",f"v_lshlrev_b32 v59, 10, v17",f"v_and_b32 v18, 1, v{vG}",f"v_lshl_add_u32 v59, v18, 5, v59",f"v_lshrrev_b32 v18, 1, v{vG}",f"v_lshl_add_u32 v59, v18, 4, v59",
  f"s_lshl_b32 {sT1}, {sCB}, 7",f"s_add_u32 s52, {sRT2}, {sT1}","s_waitcnt lgkmcnt(0)")
for u in range(2): e(f"buffer_load_dwordx4 {V(vRES+4*u,4)}, v59, {SX}, s52 offen offset:{u*64}")
e(f"s_or_b32 {sT0}, s2, {sW}",f"s_cmp_lg_u32 {sT0}, 0","s_cbranch_scc1 Lnn","s_memrealtime s[44:45]","v_mov_b32 v19, 0","s_waitcnt lgkmcnt(0)","s_lshl_b64 s[44:45], s[44:45], 4","s_or_b32 s45, s45, 0x40000000","v_mov_b32 v20, s44","v_mov_b32 v21, s45",
  "s_mov_b64 exec, 1",f"buffer_store_dwordx2 v[20:21], v19, {SDBG}, 0 offen sc1","s_mov_b64 exec, -1","Lnn:")
e(f"v_lshrrev_b32 v{vR4}, 2, v{vLANE}",f"v_mul_u32_u24 v{vWQ}, 3072, v{vR4}",f"v_and_b32 v17, 1, v{vG}",f"v_lshlrev_b32 v17, 1, v17",f"v_xor_b32 v17, v17, v{vLANE}",f"v_and_b32 v17, 3, v17",f"v_lshl_add_u32 v{vWQ}, v17, 4, v{vWQ}",
  f"s_lshl_b32 {sT0}, {sJ}, 6",f"v_add_u32 v{vWQ}, {sT0}, v{vWQ}")
e(f"s_mov_b32 {sL}, 0")
if OPT["stamp"]:
    for i in range(30): e(f"s_mov_b32 s{64+i}, 0")
stamp()
wq=dma_wq(); NE=OPT.get("ne",12)
e(f"s_mul_i32 s53, {sW}, {4*32*3072}",f"s_lshl_b32 s54, {sW}, 13"); e(*wq[:NE])
e(f"s_mov_b32 {sLB}, 0",f"s_mov_b32 {sPH}, 0",f"s_mov_b32 {sONE}, 0x3f803f80",f"s_lshl_b32 s47, {sW}, 14",f"s_lshl_b32 s46, {sCB}, 16","s_add_u32 s46, s46, s47",f"s_add_u32 s46, s46, {PO}",f"s_mul_i32 s49, {sW}, 7168",f"s_mul_i32 s48, {sJ}, 114688","s_add_u32 s48, s48, s49",f"s_add_u32 s48, s48, {P1W}",
  f"s_lshl_b32 s50, {sCB}, 2",f"s_add_u32 s50, s50, {sW}","s_mul_i32 s50, s50, 57344",f"s_add_u32 s50, s50, {P2W}",f"s_lshl_b32 s51, {sW}, 12",f"s_mul_i32 s55, {sJ}, 98304","s_add_u32 s55, s55, s51",f"s_add_u32 s55, s55, {PQ}")
for i in range(4): e(f"s_add_u32 {sT0}, {sW}, {i}",f"s_and_b32 {sT0}, {sT0}, 3",f"s_mul_i32 s{[56,99,100,101][i]}, {sT0}, 57344")
e(f"v_lshlrev_b32 v{vL16}, 4, v{vLANE}",f"v_and_b32 v{vC8}, 3, v{vLANE}",f"v_lshlrev_b32 v{vC8}, 3, v{vC8}")
for i in range(4): e(f"v_mov_b32 v{vONES+i}, {sONE}")
e(f"s_lshl_b32 {sT0}, {sG}, 8",f"s_add_u32 {sT0}, {sT0}, {FL_OFF}",f"v_and_b32 v17, 15, v{vLANE}",f"v_lshl_add_u32 v{vFL}, v17, 3, {sT0}",
  f"s_cmp_eq_u32 {sG}, 0",f"s_cselect_b32 {sT1}, 0, 256",f"v_and_b32 v17, 1, v{vG}",f"v_mul_u32_u24 v17, {sT1}, v17",f"v_sub_u32 v{vFL2}, v{vFL}, v17")
e(f"v_lshrrev_b32 v{vWA}, 3, v{vLANE}",f"v_lshlrev_b32 v{vWA}, 10, v{vWA}",f"v_lshlrev_b32 v17, 1, v{vG}",f"v_xor_b32 v17, v17, v{vLANE}",f"v_and_b32 v17, 7, v17",f"v_lshl_add_u32 v{vWA}, v17, 4, v{vWA}",f"s_lshl_b32 {sT0}, {sCB}, 7",f"v_add_u32 v{vWA}, {sT0}, v{vWA}")
e(f"s_mul_i32 {sT0}, {sJ}, 224")
for q in range(7):
    e(f"v_add_u32 v17, {64*q}, v{vLANE}",f"v_mul_u32_u24 v18, 4682, v17",f"v_lshrrev_b32 v18, 16, v18",f"v_mul_u32_u24 v{52+q}, {3584-224}, v18",f"v_lshl_add_u32 v{52+q}, v17, 4, v{52+q}",f"v_add_u32 v{52+q}, {sT0}, v{52+q}")
e(f"v_and_b32 v17, 15, v{vLANE}",f"v_lshlrev_b32 v60, 3, v17",f"v_lshl_add_u32 v60, v{vG}, 8, v60")
e(f"s_waitcnt vmcnt({NE})")
for u in range(2):
    for i in range(2): e(f"v_permlane16_swap_b32 v{vRES+4*u+i}, v{vRES+4*u+2+i}")
xepi(None,XA_OFF,SA_OFF,0)
e(f"s_cmp_lg_u32 {sW}, 0","s_cbranch_scc1 Lng","v_mov_b32 v19, 0",f"s_mov_b32 {sTO}, 0x40000","Lnp:",f"buffer_load_dwordx2 v[20:21], v19, {SDBG}, 0 offen sc1",f"s_sub_u32 {sTO}, {sTO}, 1","s_cbranch_scc1 Lend","s_waitcnt vmcnt(0)",
  "v_readfirstlane_b32 s44, v20","v_readfirstlane_b32 s45, v21","s_cmp_eq_u32 s45, 0","s_cbranch_scc1 Lnp","Lng:")
if NE<24: e(f"s_mul_i32 s53, {sW}, {4*32*3072}",f"s_lshl_b32 s54, {sW}, 13"); e(*wq[NE:])
signal(24-NE,(),False)
def packpath(lab,loads,stores):
    e(f"{lab}:")
    for i,(pre,vo,srd) in enumerate(loads): e(pre,f"buffer_load_dwordx4 {V(64+4*i,4)}, v{vo}, {srd}, {sT3} offen")
    e("s_waitcnt vmcnt(0)")
    for i,pre in enumerate(stores): e(pre,f"buffer_store_dwordx4 {V(64+4*i,4)}, v{vL16}, {SWS}, {sT3} offen sc1")
    e("s_branch Lpk")
for w in (1,2,3): e(f"s_cmp_eq_u32 {sW}, {w}",f"s_cbranch_scc1 Lpk{w}")
e(f"s_mul_i32 {sT0}, {sG}, {32*3072}",f"s_lshl_b32 {sT1}, {sG}, 11",f"s_add_u32 {sT1}, {sT1}, s55")
packpath("Lpk0a",[(f"s_add_u32 {sT3}, {sT0}, {16*ee*3072+p*1024}",vWQ,SWQ) for p in range(3) for ee in range(2)],[f"s_add_u32 {sT3}, {sT1}, {p*32768+ee*1024}" for p in range(3) for ee in range(2)])
e("Lpk1:",f"s_mul_i32 {sT3}, {sG}, 114688",f"s_mul_i32 {sT1}, {sG}, 7168",f"s_add_u32 {sT1}, {sT1}, s48",f"s_sub_u32 {sT1}, {sT1}, s49")
packpath("Lpk1a",[("",52+k,SW1) for k in range(7)],[f"s_add_u32 {sT3}, {sT1}, {k*1024}" for k in range(7)])
e("Lpk2:",f"s_lshl_b32 {sT0}, {sG}, 1",f"s_add_u32 {sT0}, {sT0}, {sHB}",f"s_mul_i32 {sT0}, {sT0}, {56*1024}",f"s_lshr_b32 {sT1}, {sG}, 2",f"s_sub_u32 {sT1}, {sT1}, 2",f"s_mul_i32 {sT1}, {sT1}, 57344",f"s_add_u32 {sT1}, {sT1}, s50",
  f"s_and_b32 {sT4}, {sG}, 3",f"s_lshl_b32 {sT2}, {sT4}, 11",f"s_add_u32 {sT2}, {sT2}, {49152-5120}",f"s_add_u32 {sT2}, {sT2}, {sT1}",f"s_mul_i32 {sT4}, {sT4}, 12288",f"s_add_u32 {sT1}, {sT1}, {sT4}",f"s_mul_i32 {sT4}, {sHB}, 7168",f"s_add_u32 {sT1}, {sT1}, {sT4}",
  f"s_cmp_eq_u32 {sHB}, 0",f"s_cselect_b32 {sT2}, {sT1}, {sT2}")
packpath("Lpk2a",[(f"s_add_u32 {sT3}, {sT0}, {k*8192}",vWA,SW2) for k in range(7)],[f"s_add_u32 {sT3}, {sT1 if k<5 else sT2}, {k*1024}" for k in range(7)])
e("Lpk3:",f"s_lshl_b32 {sT0}, {sG}, 1",f"s_add_u32 {sT0}, {sT0}, {sHB}",f"s_lshl_b32 {sT1}, {sT0}, 11",f"s_lshl_b32 {sT0}, {sT0}, 14",f"s_add_u32 {sT1}, {sT1}, s46",f"s_sub_u32 {sT1}, {sT1}, s47")
packpath("Lpk3a",[(f"s_add_u32 {sT3}, {sT0}, {k*8192}",vWA,SWO) for k in range(2)],[f"s_add_u32 {sT3}, {sT1}, {k*1024}" for k in range(2)])
e("Lpk:")
e("Llayer:")
XM,XH=0,128; ACC=64; WF=136; CS1,CS3=200,228; CV=200; STV=228
e(f"v_and_b32 v17, 1, v{vG}",f"v_lshl_add_u32 v18, v{vR4}, 6, v{vC8}",f"v_lshl_add_u32 v32, v17, 5, v18",f"v_xor_b32 v33, 32, v32",f"v_add_u32 v34, 0x10000, v32",f"v_add_u32 v35, 0x10000, v33",
  f"s_lshr_b32 {sT0}, {sW}, 1",f"s_add_u32 {sT0}, {sT0}, 1",f"s_lshl_b32 {sT0}, {sT0}, 15",f"s_and_b32 {sT1}, {sW}, 1",f"s_lshl_b32 {sT1}, {sT1}, 5",f"v_xor_b32 v36, {sT1}, v32",f"v_add_u32 v36, {sT0}, v36")
e(f"v_and_b32 v17, 15, v{vLANE}",f"v_lshlrev_b32 v18, 2, v{vG}","v_sub_u32 v17, v17, v18",f"s_mov_b32 {sT0}, 0xf149f2ca",f"v_mov_b32 v19, {sT0}",f"s_or_b32 {sT1}, {sG}, {sW}",f"s_cmp_eq_u32 {sT1}, 0",f"s_cselect_b32 {sT1}, {sT0}, 0")
for i in range(4):
    e(f"v_subrev_u32 v18, {i}, v17","v_and_b32 v37, 0x80000001, v18","v_cmp_eq_u32 vcc, 0, v37",f"v_cndmask_b32_e64 v{40+i}, v19, 0, vcc",
      "v_cmp_eq_u32 vcc, 0x80000000, v37",f"v_cndmask_b32_e64 v{44+i}, v19, 0, vcc",f"v_add_f32 v{48+i}, {sT1}, v{44+i}")
e(f"s_add_u32 {sT1}, {sRT1}, {sLB}",f"s_add_u32 {sT1}, {sT1}, {XA_OFF}",f"v_add_u32 v24, {sT1}, v{vL16}","v_add_u32 v25, 0x4000, v24",
  f"s_lshr_b32 {sT1}, {sRT1}, 4",f"s_add_u32 {sT1}, {sT1}, {sLB}",f"s_add_u32 {sT1}, {sT1}, {SA_OFF}",f"v_add_u32 v27, {sT1}, v60",
  f"s_lshl_b32 {sT0}, {sG}, 17",f"s_add_u32 {sT1}, {sLB}, {XA_OFF-16384}",f"s_add_u32 {sT1}, {sT1}, {sT0}",f"s_lshr_b32 {sT0}, {sT0}, 4",f"s_add_u32 {sT0}, {sT0}, {sLB}",f"s_add_u32 {sT0}, {sT0}, {SA_OFF-1024}",
  f"s_cmp_eq_u32 {sG}, 0",f"s_cselect_b32 {sT1}, 0xffff0000, {sT1}",f"s_cselect_b32 {sT0}, 0xffff0000, {sT0}",f"v_add_u32 v26, {sT1}, v{vL16}",f"v_add_u32 v37, {sT0}, v60")
def p1_reads(s):
    b=WF+28*(s&1)
    return [tr(V(b+4*t+2*ee,2),ad,po+s*2048+ee*1024) for t,(ad,po) in enumerate(((32,0),(33,0),(32,32768),(33,32768),(34,0),(35,0),(36,0))) for ee in range(2)]
XB=79872
e(f"s_lshl_b32 {sT0}, {sW}, 11",f"s_add_u32 {sT0}, {sT0}, {XB}",f"v_lshl_add_u32 v61, v{vLANE}, 3, {sT0}",f"v_and_b32 v17, 15, v{vLANE}",f"v_lshlrev_b32 v17, 5, v17",f"v_lshl_add_u32 v17, v{vG}, 3, v17",f"v_add_u32 v62, {sT0}, v17",
  f"v_lshl_add_u32 v63, v{vR4}, 5, v{vC8}",f"v_add_u32 v63, {sT0}, v63",
  f"v_add_u32 v17, 9216, v17",f"v_lshlrev_b32 v38, 3, v{vLANE}",f"s_cmp_ge_u32 {sW}, 2","s_cselect_b64 vcc, -1, 0",f"s_and_b32 {sT0}, {sW}, 1",f"s_lshl_b32 {sT0}, {sT0}, 9","v_cndmask_b32 v38, v38, v17, vcc",f"s_add_u32 {sT0}, {sT0}, {XB}",f"v_add_u32 v38, {sT0}, v38")
stamp()
colsum(p1_reads,lambda s,t:V(WF+28*(s&1)+4*t,4),CS1,"Lcs1",lambda:(signal(0,(),False),e(f"s_sub_u32 {sPH}, {sPH}, 1")),None,lambda:e("s_barrier"))
for i in range(28): e(f"v_accvgpr_read_b32 v{CV+i}, a{CS1+i}")
poll(vFL2)
e(*p1_reads(0))
stamp()
class Q:
    def __init__(s): s.q=[]
    def add(s,tag,ins): s.q.append(tag); return ins
    def wait(s,tag): return len(s.q)-1-max(i for i,t in enumerate(s.q) if t==tag)
def xl(dst,ad,s): return (f"s_movk_i32 {sT4}, {(s>>2)*4096}\n" if s>=4 else "")+f"buffer_load_dwordx4 {dst}, v{ad}, {SWS}, {sT4 if s>=4 else 0} offen offset:{(s&3)*1024} sc1"
def stl(dst,ad,o): return [f"buffer_load_dwordx2 {V(dst+2*k,2)}, v{ad}, {SWS}, 0 offen offset:{o+128*k} sc1" for k in range(2)]
LA1=OPT.get("la1",4); q=Q()
p1x=lambda s:[q.add(s,xl(A(r,4),ad,s)) for r,ad in ((XM+4*s,24),(XM+64+4*s,25),(XH+4*s,26))] if s<16 else []
e(*p1x(0)); e(*[q.add("st",x) for x in stl(STV,27,0)+stl(STV+4,27,1024)+stl(STV+8,37,0)])
for s in range(1,LA1): e(*p1x(s))
NWO=OPT.get("nwo",8); wo=dma_wo()
e(f"s_cmp_eq_u32 {sL}, 0","s_cbranch_scc1 Lnwo"); e(*wo[:NWO]); e("Lnwo:")
stv=sum([cap(stats,STV+4*m,STV+4*m+1,17+m) for m in range(3)],[]); stv=[stv[i+20*m] for i in range(20) for m in range(3)]
for s in range(16):
    b=WF+28*(s&1)
    vm=q.wait(s)
    mm=[[mfma(V(ACC+24*m+4*t,4),V(b+4*t,4),A(XM+64*m+4*s,4),V(ACC+24*m+4*t,4) if s else "0") for m in range(2)] for t in range(6)]
    mm.append([mfma(V(ACC+48,4),V(b+24,4),A(XH+4*s,4),V(ACC+48,4) if s else "0")])
    ld=p1x(s+LA1)
    if 4<=s<14: ld=merge(stv[:6],ld); stv=stv[6:]
    pstep(mm,p1_reads(s+1) if s<15 else [],ld,s==0,vm,s in(0,8))
assert not stv
stamp()
e(f"s_cmp_lg_u32 {sL}, 0","s_cbranch_scc1 Lpkb",f"s_add_u32 {sPH}, {sPH}, 1",f"v_lshlrev_b32 v18, 8, v{vR4}",f"v_lshl_add_u32 v18, v{vC8}, 2, v18",f"v_add_u32 v18, {FL_OFF}, v18")
poll(18,4); e(*wo[:NWO]); e("s_branch Lpkd","Lpkb:","s_barrier","Lpkd:")
PK=120; XB=79872
n0=len(L)
def scale_tile(acc,cs,st,dst):
    e(pkfma(acc,cs,st),pkfma(acc+2,cs+2,st),pkmul(acc,acc,st,1),pkmul(acc+2,acc+2,st,1),f"v_cvt_pk_bf16_f32 v{dst}, v{acc}, v{acc+1}",f"v_cvt_pk_bf16_f32 v{dst+1}, v{acc+2}, v{acc+3}")
scale_tile(ACC+48,CV+24,STV+8,PK+24); e(f"ds_write_b64 v38, {V(PK+24,2)}")
for m in (1,0):
    for t in (2,3,4,5):
        scale_tile(ACC+24*m+4*t,CV+4*t,STV+4*m,PK+12*m+2*t)
        if t>=4: e(f"ds_write_b64 v62, {V(PK+12*m+2*t,2)} offset:{9216+((m+1)*2+t-4)*512}")
        elif m==1: e(f"ds_write_b64 v61, {V(PK+12*m+2*t,2)} offset:{(4+t-2)*512}")
e("s_waitcnt lgkmcnt(0)","s_barrier")
KP=148; VF=152
for h in range(2):
    e(f"ds_read_b64 {V(KP+2*h,2)}, v61 offset:{h*512}")
    for k in range(3): e(tr(V(VF+8*h+2*k,2),63,9216+(k*2+h)*512))
for m in range(2):
    for t in range(2): scale_tile(ACC+24*m+4*t,CV+4*t,STV+4*m,PK+12*m+2*t)
U=[(m,h) for m in range(2) for h in range(2)]
S=lambda u:168+16*u
def mf16(d,a,b,c): return f"v_mfma_f32_16x16x16_bf16 {d}, {a}, {b}, {c}"
for u,(m,h) in enumerate(U): e(mf16(V(S(u)+4,4),V(PK+12*m+4+2*h,2),V(PK+12*m+2*h,2),V(40,4)))
e("s_waitcnt lgkmcnt(0)")
for u,(m,h) in list(enumerate(U))[::-1]: e(mf16(V(S(u),4),V(KP+2*h,2) if m==0 else V(PK+4+2*h,2),V(PK+12*m+2*h,2),V(48 if m==0 else 44,4)))
def steps(f):
    for u in (3,2,1,0): e(*f(S(u),u))
steps(lambda s,u:[f"v_max3_f32 v{s+8}, v{s+4}, v{s+5}, v{s+6}",f"v_max3_f32 v{s+9}, v{s+7}, v{s}, v{s+1}"])
steps(lambda s,u:[f"v_max3_f32 v{s+8}, v{s+8}, v{s+2}, v{s+3}"])
steps(lambda s,u:[f"v_max_f32 v{s+8}, v{s+8}, v{s+9}"])
for sw in (16,32):
    steps(lambda s,u:[f"v_mov_b32 v{s+9}, v{s+8}"])
    steps(lambda s,u:[f"v_permlane{sw}_swap_b32 v{s+8}, v{s+9}"])
    steps(lambda s,u:[f"v_max_f32 v{s+8}, v{s+8}, v{s+9}"])
e(f"v_mov_b32 v20, 0x3eb8aa3b")
steps(lambda s,u:[f"v_mul_f32 v{s+8}, v20, v{s+8}"])
steps(lambda s,u:[f"v_pk_fma_f32 {V(s+2*i,2)}, {V(s+2*i,2)}, v[20:21], {V(s+8,2)} op_sel_hi:[1,0,0] neg_lo:[0,0,1] neg_hi:[0,0,1]" for i in range(4)]+[f"v_exp_f32 v{s+i}, v{s+i}" for i in range(8)])
steps(lambda s,u:[f"v_cvt_pk_bf16_f32 v{s+12+i}, v{s+2*i}, v{s+2*i+1}" for i in range(4)])
steps(lambda s,u:[mfma(V(s,4),V(VF+8*U[u][1]+2*U[u][0],4),V(s+12,4),"0"),mfma(V(s+4,4),V(vONES,4),V(s+12,4),"0")])
steps(lambda s,u:[f"v_rcp_f32 v{s+4}, v{s+4}"])
steps(lambda s,u:[pkmul(s+2*i,s+2*i,s+4,0) for i in range(2)])
steps(lambda s,u:[f"v_cvt_pk_bf16_f32 v{96+4*U[u][0]+2*U[u][1]+i}, v{s+2*i}, v{s+2*i+1}" for i in range(2)])
body=L[n0:]; del L[n0:]; e(*spread(body,wo[NWO:],0.0,0.5))
e(f"s_lshl_b32 {sT1}, {sJ}, 10",f"s_add_u32 {sT0}, {sRT1}, {sT1}",f"s_add_u32 {sT0}, {sT0}, {sLB}",f"s_add_u32 {sT1}, {sT0}, 0x4000")
e(f"buffer_store_dwordx4 {V(100,4)}, v{vL16}, {SWS}, {sT1} offen sc1",f"buffer_store_dwordx4 {V(96,4)}, v{vL16}, {SWS}, {sT0} offen sc1")
stamp()
w1=dma_w1(0)+dma_w1(1); e(*w1[:8]); signal(8); e(*w1[8:])
e(f"s_mov_b32 {sT2}, 98304"); rd128(sT2,32)
e(f"s_add_u32 {sT0}, {sRT2}, {sLB}",f"v_add_u32 v24, {sT0}, v{vL16}")
def rd4(b,off): return [tr(A(b+4*t+2*ee,2),32+t,off+ee*2048) for t in range(4) for ee in range(2)]
NP=6
for s in range(NP): e(*rd4(64+16*s,s*4096))
poll(vFL)
stamp()
for s in range(16): e(xl(A(4*s,4),24,s))
e(*dma_w1(2))
for s in range(16):
    b=64+16*(s%NP)
    e(f"s_waitcnt vmcnt({22-s}) lgkmcnt({min(15,8*min(NP-1,15-s)) if s else 0})")
    e(*[mfma(V(64+4*t,4),A(b+4*t,4),A(4*s,4),V(64+4*t,4) if s else "0") for t in range(4)])
    if s+NP<16: e(*rd4(b,(s+NP)*4096))
stamp()
e("s_barrier")
xepi(64,X1_OFF,S1_OFF,0)
e(*dma_w1(3)); signal(7)
e(*dma_w2((0,1,2)))
rd128('s51',40)
for t in range(4): e(f'v_add_u32 v{44+t}, 0x10000, v{40+t}',f'v_add_u32 v{48+t}, 0x20000, v{40+t}')
e(f"v_mul_u32_u24 v32, 224, v{vR4}",f"v_add_u32 v32, v32, v{vC8}",f"v_add_u32 v33, 57344, v32")
e(f"s_add_u32 {sT1}, {sRT1}, {sLB}",f"s_add_u32 {sT1}, {sT1}, {X1_OFF}",f"v_add_u32 v24, {sT1}, v{vL16}","v_add_u32 v25, 0x4000, v24",
  f"s_lshr_b32 {sT1}, {sRT1}, 4",f"s_add_u32 {sT1}, {sT1}, {sLB}",f"s_add_u32 {sT1}, {sT1}, {S1_OFF}",f"v_add_u32 v27, {sT1}, v60")
def p3_reads(s):
    b=WF+28*(s&1)
    return [tr(V(b+4*t+2*ee,2),32+(s>>3),(s&7)*7168+ee*3584+32*t) for t in range(7) for ee in range(2)]
colsum(p3_reads,lambda s,t:V(WF+28*(s&1)+4*t,4),CS3,"Lcs3",None,lambda:e("s_waitcnt vmcnt(12)","s_barrier"))
for i in range(28): e(f"v_accvgpr_read_b32 v{CV+i}, a{CS3+i}")
e(*p3_reads(0))
poll(vFL)
stamp()
LA3=OPT.get("la3",5); q=Q(); AC=64
p3x=lambda s:[q.add(s,xl(A(64*m+4*s,4),24+m,s)) for m in range(2)] if s<16 else []
e(*p3x(0)); e(*[q.add("st",x) for x in stl(STV,27,0)+stl(STV+4,27,1024)])
for s in range(1,LA3): e(*p3x(s))
stv=sum([cap(stats,STV+4*m,STV+4*m+1,17+m)+[f"v_mul_f32 v{STV+4*m+2}, 0xbfb8aa3b, v{STV+4*m+1}"] for m in range(2)],[]); stv=[stv[i+21*m] for i in range(21) for m in range(2)]
PRE=128
def rd4a(b,off): return [tr(A(b+4*t+2*ee,2),40+(4+t if off<131072 else 8+t),(off&65535)+ee*2048) for t in range(4) for ee in range(2)]
for k in range(3): e(*rd4a(PRE+16*k,SLOT[k]*16384))
e("s_waitcnt lgkmcnt(0)"); e(*[q.add("w",x) for x in dma_w2((3,11,12))])
w2m={12:dma_w2((13,))}
for s in range(16):
    b=WF+28*(s&1)
    vm=q.wait(s)
    mm=[[mfma(V(AC+28*m+4*t,4),V(b+4*t,4),A(64*m+4*s,4),V(AC+28*m+4*t,4) if s else "0") for m in range(2)] for t in range(7)]
    ld=p3x(s+LA3)
    if s in w2m: ld+=[q.add("w",x) for x in w2m[s]]
    if 4<=s<11: ld=merge(stv[:6],ld); stv=stv[6:]
    if s==11: e("s_waitcnt lgkmcnt(0)"); e(*rd4a(PRE+48,SLOT[3]*16384)); e("s_waitcnt lgkmcnt(0)")
    pstep(mm,p3_reads(s+1) if s<15 else [],ld,s==0,vm,s in(0,8))
stamp()
assert not stv
e("s_barrier")
n0=len(L)
e(f"s_lshr_b32 {sT0}, {sRT1}, 14",f"s_mul_i32 {sT0}, {sT0}, 57344",f"s_mul_i32 {sT1}, {sJ}, 3584",f"s_add_u32 {sT0}, {sT0}, {sT1}",f"s_add_u32 {sT0}, {sT0}, {sLB}",f"s_add_u32 {sT0}, {sT0}, {H_OFF}",f"v_lshlrev_b32 v34, 3, v{vLANE}")
for m in range(2):
    st=STV+4*m
    for t0 in (0,2,4,6):
        n=8 if t0<6 else 4; a=AC+28*m+4*t0; c=CV+4*t0; tm=160; pk=120+16*m+2*t0
        for i in range(0,n,2): e(pkfma(a+i,c+i,st))
        for i in range(0,n,2): e(pkmul(tm+i,a+i,st+2,0))
        for i in range(0,n,2): e(f"v_exp_f32 v{tm+i}, v{tm+i}",f"v_exp_f32 v{tm+i+1}, v{tm+i+1}",pkmul(a+i,a+i,st,1))
        for i in range(0,n,2): e(f"v_pk_add_f32 {V(tm+i,2)}, {V(tm+i,2)}, 1.0 op_sel_hi:[1,0]")
        for i in range(n): e(f"v_rcp_f32 v{tm+i}, v{tm+i}")
        for i in range(0,n,2): e(f"v_pk_mul_f32 {V(a+i,2)}, {V(a+i,2)}, {V(tm+i,2)}")
        for i in range(n//2): e(f"v_cvt_pk_bf16_f32 v{pk+i}, v{a+2*i}, v{a+2*i+1}")
        if t0<6: e(f"buffer_store_dwordx4 {V(pk,4)}, v{vL16}, {SWS}, {sT0} offen offset:{t0*512} sc1")
        else: e(f"buffer_store_dwordx2 {V(pk,2)}, v34, {SWS}, {sT0} offen offset:3072 sc1")
    if m==0: e(f"s_add_u32 {sT0}, {sT0}, 57344")
w2=dma_w2(range(4,11)); N2=OPT.get("n2",4); N3=OPT.get("n3",10)
body=L[n0:]; del L[n0:]; e(*spread(body,w2[:N2],0.0,0.8))
stamp()
e(*w2[N2:N2+N3]); signal(N3)
e(*w2[N2+N3:])
def rd4v(b,off): return [tr(V(b+4*t+2*ee,2),40+(t if off<65536 else 4+t if off<131072 else 8+t),(off&65535)+ee*2048) for t in range(4) for ee in range(2)]
e(f"s_lshr_b32 {sT0}, {sRT2}, 14",f"s_sub_u32 {sT0}, {sT0}, {sW}",f"s_mul_i32 {sT0}, {sT0}, 57344",f"s_mul_i32 {sT1}, {sW}, 14336",f"s_add_u32 {sT0}, {sT0}, {sT1}",f"s_add_u32 {sT0}, {sT0}, {sLB}",f"s_add_u32 {sT0}, {sT0}, {H_OFF}",
  f"v_add_u32 v36, {sT0}, v{vL16}",f"v_lshl_add_u32 v37, v{vLANE}, 3, {sT0}")
poll(vFL)
stamp()
def af(s,i,c=4,o=0):
    return A(((s%8)*4+i)*4+o,c)
q=Q(); LA4=OPT.get("la4",4)
def p4x(s):
    o=[]
    for i in range(4 if s<14 else 0):
        if s<12:
            jj,u=divmod(s,3); o.append(q.add(s,f"s_add_u32 {sT4}, s{[56,99,100,101][i]}, {jj*3584}\nbuffer_load_dwordx4 {af(s,i)}, v36, {SWS}, {sT4} offen offset:{u*1024} sc1"))
        else:
            for ee in range(2):
                jj=(s-12)*2+ee; o.append(q.add(s,f"s_add_u32 {sT4}, s{[56,99,100,101][i]}, {jj*3584}\nbuffer_load_dwordx2 {af(s,i,2,2*ee)}, v37, {SWS}, {sT4} offen offset:3072 sc1"))
    return o
for s in range(LA4): e(*p4x(s))
WB=lambda s: 232 if s&1 else 216
WR=lambda s,t: A(PRE+16*s+4*t,4) if s<4 else V(WB(s)+4*t,4)
for s in range(14):
    vm=q.wait(s)
    mm=[[mfma(V(64+16*i+4*t,4),WR(s,t),af(s,i),V(64+16*i+4*t,4) if s else "0") for i in range(4)] for t in range(4)]
    ld=p4x(s+LA4)
    pstep(mm,rd4v(WB(s+1),SLOT[s+1]*16384) if 3<=s<13 else [],ld,s<4,vm,s in(0,7))
stamp()
for i in range(1,4): e(f"s_add_u32 {sT0}, {sW}, {i}",f"s_and_b32 {sT0}, {sT0}, 3",f"s_mul_i32 {sT0}, {sT0}, 12288",f"s_add_u32 {sT0}, {sT0}, {98304+(i-1)*4096}",f"v_add_u32 v{16+i}, {sT0}, v{vL16}")
e(f"s_mul_i32 {sT0}, {sW}, 12288",f"s_add_u32 {sT0}, {sT0}, 98304",f"v_add_u32 v20, {sT0}, v{vL16}","s_barrier")
n0=len(L)
for i in range(1,4):
    for t in range(4): e(f"ds_write_b128 v{16+i}, {V(64+16*i+4*t,4)} offset:{t*1024}")
e("s_waitcnt lgkmcnt(0)","s_barrier")
for k in range(12): e(f"ds_read_b128 {V(128+4*k,4)}, v20 offset:{k*1024}")
e("s_waitcnt lgkmcnt(8)")
for i in range(8): e(f"v_pk_add_f32 {V(64+2*i,2)}, {V(64+2*i,2)}, {V(128+2*i,2)}")
e("s_waitcnt lgkmcnt(0)")
for i in range(8): e(f"v_pk_add_f32 {V(144+2*i,2)}, {V(144+2*i,2)}, {V(160+2*i,2)}")
for i in range(8): e(f"v_pk_add_f32 {V(128+2*i,2)}, {V(64+2*i,2)}, {V(144+2*i,2)}")
red=L[n0:]; del L[n0:]
e(f"s_cmp_lg_u32 {sL}, 0","s_cbranch_scc1 Lout")
wq=sum([dma_wq2(k) for k in range(6)],[]); N1=OPT.get("n1",4)
e(*spread(red,wq[:N1],0.0,0.4))
xepi(128,XA_OFF,SA_OFF,16*MB)
stamp()
e(*wq[N1:N1+10]); signal(10); e(*wq[N1+10:])
e(f"s_mov_b32 {sL}, 1",f"s_mov_b32 {sLB}, {16*MB}","s_branch Llayer")
e("Lout:")
e(*red)
xepi(128,0,0,0,False)
for u in range(2):
    for i in range(2): e(f"v_permlane16_swap_b32 v{vRES+4*u+i}, v{vRES+4*u+2+i}")
for u in range(2): e(f"buffer_store_dwordx4 {V(vRES+4*u,4)}, v59, {SOUT}, s52 offen offset:{u*64}")
e("Lfin:","s_waitcnt vmcnt(0)")
if OPT["stamp"]:
    stamp()
    e(f"s_cmp_lg_u32 {sW}, 0","s_cbranch_scc1 Lend",f"s_lshl_b32 {sT0}, {sB}, 7",f"s_add_u32 {sT0}, {sT0}, {ST_OFF}","s_mov_b64 exec, 1","v_mov_b32 v18, 0")
    for i in range(30): e(f"v_mov_b32 v17, s{64+i}",f"buffer_store_dword v17, v18, {SWS}, {sT0} offen offset:{4*i}")
e("Lend:","s_endpgm")
K=NAME+"_kernel"
hdr=f"""; @launch grid=(256,1,1) block=(256,1,1) lds=163840
.amdgcn_target "amdgcn-amd-amdhsa--gfx950"
.text
.globl {K}
.p2align 8
.type {K},@function
{K}:
"""
ftr=f"""
.section .rodata,"a"
.p2align 6
.amdhsa_kernel {K}
  .amdhsa_next_free_vgpr 512
  .amdhsa_next_free_sgpr 102
  .amdhsa_accum_offset 256
  .amdhsa_group_segment_fixed_size 0
  .amdhsa_kernarg_size 72
  .amdhsa_user_sgpr_count 2
  .amdhsa_user_sgpr_kernarg_segment_ptr 1
  .amdhsa_system_sgpr_workgroup_id_x 1
.end_amdhsa_kernel
"""
open(sys.argv[1],"w").write(hdr+"\n".join(fix(L))+ftr)
print("stamps",nst[0],"lines",len(L))
```

```python
import sys
from asmlib import fix
NAME="interleave_layers__sliding_local_dilated__dense_activation_silu__prompt"
OPT=dict(stamp=0, stop=99, nodot=0)
for a in sys.argv[2:]:
    k,v=a.split("="); OPT[k]=int(v)
L=[]
def e(*x):
    for t in x:
        for u in t.split("\n"):
            u=u.strip()
            if u: L.append(u)
def V(n,c=1): return f"v{n}" if c==1 else f"v[{n}:{n+c-1}]"
def A(n,c=1): return f"a{n}" if c==1 else f"a[{n}:{n+c-1}]"
def merge(main,*fill):
    out=[]; n=len(main); pos=[0]*len(fill)
    for i,m in enumerate(main):
        out.append(m)
        for k,f in enumerate(fill):
            tgt=(len(f)*(i+1)+n-1)//n
            while pos[k]<min(tgt,len(f)): out.append(f[pos[k]]); pos[k]+=1
    return out
MB=1<<20
O_OFF,X1_OFF,H_OFF,XA_OFF,SA_OFF,S1_OFF,FL_OFF,ST_OFF=0,2*MB,4*MB,12*MB,14*MB,14*MB+262144,40*MB,41*MB
SX,SWQ,SWO,SW1,SW2,SWS,SOUT,SDBG="s[4:7]","s[8:11]","s[12:15]","s[16:19]","s[20:23]","s[24:27]","s[28:31]","s[32:35]"
sG,sJ,sW,sL="s36","s37","s38","s39"
sKS=40
sES,sT0,sT1,sT2,sLB,sPH,sHB,sCB="s56","s57","s58","s59","s60","s61","s62","s63"
sB="s96"; sONE="s97"; sTO="s98"
vLANE,vL16,vRES,vX1,vWQ,vFL,vFL2=0,1,2,10,11,12,13
vR4,vG,vC8=14,15,16
vONES=28
nst=[0]; skip=0
def stamp(x=False):
    global skip
    skip+=1
    if OPT.get('st4') and skip in (2,7,8,9,14): return
    if OPT["stamp"]:
        i=nst[0]; nst[0]+=1
        if i>=15: return
        e("s_memtime s[94:95]" if OPT.get("clk") else "s_memrealtime s[94:95]","s_waitcnt lgkmcnt(0)",f"s_cmp_eq_u32 {sL}, 0",f"s_cselect_b32 s{64+i}, s94, s{64+i}",f"s_cselect_b32 s{79+i}, s{79+i}, s94")
def signal(n=0,rb=(),st=True):
    lab=f"Lsig{len(L)}"
    e(f"s_waitcnt vmcnt({n})")
    if OPT.get("st3") and st: stamp()
    e("s_barrier",f"s_add_u32 {sPH}, {sPH}, 1",f"s_cmp_lg_u32 {sW}, 0",f"s_cbranch_scc1 {lab}",
      f"s_or_b32 {sT0}, s44, {sPH}",f"v_mov_b32 v22, {sT0}","v_mov_b32 v23, s45","s_mov_b64 exec, 1",f"s_lshl_b32 {sT1}, {sJ}, 3",f"buffer_store_dwordx2 v[22:23], v{vFL}, {SWS}, {sT1} offen sc1","s_mov_b64 exec, -1",f"{lab}:")
def poll(vaddr,n=1):
    lab=f"Lpoll{len(L)}"
    e(f"s_cmp_lg_u32 {sW}, 0",f"s_cbranch_scc1 {lab}x",f"s_mov_b32 {sTO}, 0x40000",f"s_or_b32 {sT0}, s44, {sPH}",f"s_sub_u32 {sT1}, 16, {sPH}",f"{lab}:")
    if n==4: e(f"buffer_load_dwordx4 v[248:251], v{vaddr}, {SWS}, 0 offen sc1",f"buffer_load_dwordx4 v[252:255], v{vaddr}, {SWS}, 0 offen offset:16 sc1")
    else: e(f"buffer_load_dwordx2 v[248:249], v{vaddr}, {SWS}, 0 offen sc1")
    e(f"s_sub_u32 {sTO}, {sTO}, 1","s_cbranch_scc1 Lend","s_waitcnt vmcnt(0)")
    for k in range(n):
        e(f"v_subrev_u32 v{248+2*k}, {sT0}, v{248+2*k}",f"v_xor_b32 v{249+2*k}, s45, v{249+2*k}")
        if k: e(f"v_max_u32 v248, v248, v{248+2*k}",f"v_or_b32 v249, v249, v{249+2*k}")
    e(f"v_cmp_gt_u32 vcc, {sT1}, v248","v_cmp_eq_u32 s[2:3], 0, v249","s_and_b64 vcc, vcc, s[2:3]","s_cmp_eq_u64 vcc, exec",f"s_cbranch_scc0 {lab}",f"{lab}x:","s_waitcnt vmcnt(0) lgkmcnt(0)","s_barrier")
def dma(vo,srd,so): e(f"buffer_load_dwordx4 v{vo}, {srd}, {so} offen lds")
def xsum(r,t,op="v_add_f32"):
    e(f"v_mov_b32 v{t}, v{r}",f"v_permlane16_swap_b32 v{r}, v{t}",f"{op} v{r}, v{r}, v{t}",f"v_mov_b32 v{t}, v{r}",f"v_permlane32_swap_b32 v{r}, v{t}",f"{op} v{r}, v{r}, v{t}")
def stats(su,sq,t):
    e(f"v_add_f32 v{su}, v{su}, v{su+2}",f"v_add_f32 v{sq}, v{sq}, v{sq+2}")
    xsum(su,t); xsum(sq,t)
    e(f"v_mul_f32 v{su}, 0x3b000000, v{su}",f"v_mul_f32 v{sq}, 0x3b000000, v{sq}",f"v_fma_f32 v{sq}, -v{su}, v{su}, v{sq}",f"v_max_f32 v{sq}, 0, v{sq}",
      f"v_add_f32 v{sq}, 0x3727c5ac, v{sq}",f"v_rsq_f32 v{sq}, v{sq}")
def mfma(d,a,b,c): return f"v_mfma_f32_16x16x32_bf16 {d}, {a}, {b}, {c}"
def tr(d,ad,off): return f"ds_read_b64_tr_b16 {d}, v{ad} offset:{off}"

sT3,sT4="s40","s41"
sRT2,sRT1="s42","s43"
vWA=10
def D(m0,so,vo,srd): return f"{m0}\n{so}\nbuffer_load_dwordx4 v{vo}, {srd}, {sT3} offen lds"
def dma_wq():
    return [D(f"s_add_u32 m0, s54, {p*32768+s*2048+ee*1024}",f"s_add_u32 {sT3}, s53, {(32*s+16*ee)*3072+p*1024}",vWQ,SWQ) for s in range(4) for ee in range(2) for p in range(3)]
PQ,PO,P1W,P2W=44*MB,46*MB,47*MB,50*MB
def PD(ldsb,lds,srcb,src,n):
    o=[]
    for i in range(n):
        pre=f"s_add_u32 m0, {ldsb}, {lds+i*1024}\ns_add_u32 {sT3}, {srcb}, {src+i*1024}\n" if i%4==0 else ""
        o.append(pre+f"buffer_load_dwordx4 v{vL16}, {SWS}, {sT3} offen offset:{(i%4)*1024} sc1 lds")
    return o
def dma_wo(): return PD("s47",98304,"s46",0,16)
def dma_w1(k): return PD("s49",k*28672,"s48",k*28672,7)
SLOT={0:7,1:8,2:9,3:7,11:8,12:9,13:7,**{4+k:k for k in range(7)}}
def dma_w2(steps): return [x for st in steps for x in PD("s51",SLOT[st]*16384,"s50",st*4096,4)]
def dma_wq2(k): return PD("s51",k*16384,"s55",k*16384,4)
def rd128(base,v0):
    e(f"v_lshrrev_b32 v17, 1, v{vR4}",f"v_and_b32 v17, 3, v17",f"v_lshl_add_u32 v18, v{vR4}, 7, v{vC8}",f"v_add_u32 v18, {base}, v18")
    for t in range(4): e(f"v_xor_b32 v{v0+t}, {t}, v17",f"v_lshl_add_u32 v{v0+t}, v{v0+t}, 5, v18")
def cap(f,*a):
    n=len(L); f(*a); r=L[n:]; del L[n:]; return r
def spread(main,fill,lo=0.0,hi=1.0):
    m2=[]
    for x in main:
        if m2 and m2[-1].split("\n")[-1].startswith("s_cmp"): m2[-1]+="\n"+x
        else: m2.append(x)
    main=m2
    n=len(main); a=int(n*lo); b=max(a+1,int(n*hi)); return main[:a]+merge(main[a:b],fill)+main[b:]
def pkfma(a,c,mean): return f"v_pk_fma_f32 {V(a,2)}, {V(mean,2)}, {V(c,2)}, {V(a,2)} op_sel_hi:[0,1,1] neg_lo:[1,0,0] neg_hi:[1,0,0]"
def pkmul(d,a,pair,hi): return f"v_pk_mul_f32 {V(d,2)}, {V(a,2)}, {V(pair,2)} "+("op_sel:[0,1] op_sel_hi:[1,1]" if hi else "op_sel_hi:[1,0]")
def xepi(acc,xoff,soff,nxt,st=True):
    for k in range(8):
        r=vRES+k
        e(f"v_lshlrev_b32 v{96+2*k}, 16, v{r}",f"v_and_b32 v{97+2*k}, 0xffff0000, v{r}")
        if acc is not None: e(f"v_pk_add_f32 {V(96+2*k,2)}, {V(96+2*k,2)}, {V(acc+2*k,2)}",f"v_cvt_pk_bf16_f32 v{r}, v{96+2*k}, v{97+2*k}")
    if not st: return
    e(f"s_lshl_b32 {sT1}, {sCB}, 11",f"s_add_u32 {sT1}, {sT1}, {sRT2}",f"s_add_u32 {sT1}, {sT1}, {sLB}",f"s_add_u32 s53, {sT1}, {xoff+nxt}")
    for u in range(2): e(f"buffer_store_dwordx4 {V(vRES+4*u,4)}, v{vL16}, {SWS}, s53 offen offset:{u*1024} sc1")
    e(f"v_pk_mul_f32 v[20:21], v[96:97], v[96:97]")
    for k in range(1,8): e(f"v_pk_fma_f32 v[20:21], {V(96+2*k,2)}, {V(96+2*k,2)}, v[20:21]",f"v_pk_add_f32 v[96:97], v[96:97], {V(96+2*k,2)}")
    e("v_add_f32 v21, v20, v21","v_add_f32 v20, v96, v97")
    xsum(20,17); xsum(21,18)
    e(f"s_lshr_b32 {sT1}, {sRT2}, 4",f"s_lshl_b32 {sT0}, {sCB}, 7",f"s_add_u32 {sT1}, {sT1}, {sT0}",f"s_add_u32 {sT1}, {sT1}, {sLB}",f"s_add_u32 s54, {sT1}, {soff+nxt}",f"v_lshlrev_b32 v17, 3, v{vLANE}",
      "s_mov_b64 exec, 0xffff",f"buffer_store_dwordx2 v[20:21], v17, {SWS}, s54 offen sc1","s_mov_b64 exec, -1")
XRB=[f"buffer_load_dwordx4 v[248:251], v{vL16}, {SWS}, s53 offen offset:{u*1024} sc1" for u in range(2)]+[f"v_and_b32 v17, 0x70, v{vL16}",f"buffer_load_dwordx4 v[248:251], v17, {SWS}, s54 offen sc1"]
def cs_part(off,cs,lab,pre):
    e(f"s_cmp_lg_u32 {sL}, 0",f"s_cbranch_scc1 {lab}"); pre()
    rd=lambda s:[tr(V(WF+8*(s%6)+4*t+2*ee,2),52+t+2*(off(s,ee)>>16),off(s,ee)&65535) for t in range(2) for ee in range(2)]
    for s in range(3): e(*rd(s))
    for s in range(16):
        e(f"s_waitcnt lgkmcnt({4*min(2,15-s)})")
        e(*[mfma(A(cs+4*t,4),V(WF+8*(s%6)+4*t,4),V(vONES,4),A(cs+4*t,4) if s else "0") for t in range(2)])
        if s+3<16: e(*rd(s+3))
    e(f"{lab}:")
def cs_fin(nt,cs,lab):
    e(f"s_cmp_lg_u32 {sL}, 0",f"s_cbranch_scc1 {lab}")
    e(f"v_lshlrev_b32 v17, 4, v{vG}",f"s_lshl_b32 {sT0}, {sW}, 6",f"v_add_u32 v19, {sT0}, v17","s_mov_b32 exec_lo, 0x10001","s_mov_b32 exec_hi, 0x10001")
    e(f"ds_write_b128 v19, {A(cs,4)}",f"ds_write_b128 v19, {A(cs+4,4)} offset:256","s_mov_b64 exec, -1","s_waitcnt lgkmcnt(0)","s_barrier")
    for R in (V,A):
        for t in range(7): e(f"ds_read_b128 {R((CV if R is V else cs)+4*t,4)}, v{19 if t>=nt else 17} offset:{128 if t>=nt else t*64}")
    e("s_waitcnt lgkmcnt(0)")
    if nt==7: e("s_barrier")
    e(f"{lab}:")
def pstep(groups,nxt,ld,first,vm,later):
    nt=len(groups); out=[]; k=0
    for t,g in enumerate(groups):
        if first: w=f"s_waitcnt vmcnt({vm}) lgkmcnt(0)" if t==0 else None
        else:
            n=2*(nt-1-t)+(2*t if nxt else 0)
            if OPT.get("hw",1): n=max(0,n-2) if t+1<nt else n
            w=(f"s_waitcnt vmcnt({vm}) lgkmcnt({n})" if t==0 else f"s_waitcnt lgkmcnt({n})" if not(OPT.get("hw",1) and t&1) else None)
        if w: out.append(w)
        if t==0 and later and OPT.get("st4"): out+=cap(stamp,True); out.append("s_nop 0")
        r=nxt[2*t:2*t+2] if nxt else []
        tgt=(len(ld)*(t+1)+nt-1)//nt; l=ld[k:tgt]; k=max(k,tgt)
        out+=merge(g,r,l)
    e(*out)
e(f"s_cmp_ge_u32 s2, 256","s_cbranch_scc1 Lend",f"s_mov_b32 {sB}, s2")
e("s_load_dwordx2 s[4:5], s[0:1], 0","s_load_dwordx2 s[8:9], s[0:1], 8","s_load_dwordx2 s[12:13], s[0:1], 16","s_load_dwordx2 s[16:17], s[0:1], 32","s_load_dwordx2 s[20:21], s[0:1], 40",
  "s_load_dwordx2 s[24:25], s[0:1], 64","s_load_dwordx2 s[28:29], s[0:1], 48","s_load_dwordx2 s[32:33], s[0:1], 56")
for b,n in ((4,2*MB),(8,512*3072),(12,512*1024),(16,512*3584),(20,1792*1024),(24,64*MB),(28,2*MB),(32,256)):
    e(f"s_mov_b32 s{b+2}, {n}",f"s_mov_b32 s{b+3}, 0x20000")
e(f"v_lshrrev_b32 v17, 6, v0",f"v_and_b32 v{vLANE}, 63, v0",f"v_readfirstlane_b32 {sW}, v17",
  f"s_and_b32 {sT0}, s2, 7",f"s_lshr_b32 {sT1}, s2, 3",f"s_and_b32 {sJ}, {sT1}, 15",f"s_lshr_b32 {sT1}, {sT1}, 4",f"s_lshl_b32 {sG}, {sT0}, 1",f"s_add_u32 {sG}, {sG}, {sT1}",
  f"s_lshr_b32 {sHB}, {sJ}, 3",f"s_and_b32 {sCB}, {sJ}, 7",
  f"s_lshl_b32 {sT0}, {sG}, 3",f"s_lshl_b32 {sT1}, {sHB}, 2",f"s_add_u32 {sT1}, {sT1}, {sT0}",f"s_add_u32 {sT1}, {sT1}, {sW}",f"s_lshl_b32 {sRT2}, {sT1}, 14",f"s_lshl_b32 {sT1}, {sW}, 1",f"s_add_u32 {sT1}, {sT1}, {sT0}",f"s_lshl_b32 {sRT1}, {sT1}, 14")
e(f"v_lshrrev_b32 v{vG}, 4, v{vLANE}",f"v_and_b32 v17, 15, v{vLANE}",f"v_lshlrev_b32 v59, 10, v17",f"v_and_b32 v18, 1, v{vG}",f"v_lshl_add_u32 v59, v18, 5, v59",f"v_lshrrev_b32 v18, 1, v{vG}",f"v_lshl_add_u32 v59, v18, 4, v59",
  f"s_lshl_b32 {sT1}, {sCB}, 7",f"s_add_u32 s52, {sRT2}, {sT1}","s_waitcnt lgkmcnt(0)")
for u in range(2): e(f"buffer_load_dwordx4 {V(vRES+4*u,4)}, v59, {SX}, s52 offen offset:{u*64}")
e(f"s_or_b32 {sT0}, s2, {sW}",f"s_cmp_lg_u32 {sT0}, 0","s_cbranch_scc1 Lnn","s_memrealtime s[44:45]","v_mov_b32 v19, 0","s_waitcnt lgkmcnt(0)","s_lshl_b64 s[44:45], s[44:45], 4","s_or_b32 s45, s45, 0x40000000","v_mov_b32 v20, s44","v_mov_b32 v21, s45",
  "s_mov_b64 exec, 1",f"buffer_store_dwordx2 v[20:21], v19, {SDBG}, 0 offen sc1","s_mov_b64 exec, -1","Lnn:")
e(f"v_lshrrev_b32 v{vR4}, 2, v{vLANE}",f"v_mul_u32_u24 v{vWQ}, 3072, v{vR4}",f"v_and_b32 v17, 1, v{vG}",f"v_lshlrev_b32 v17, 1, v17",f"v_xor_b32 v17, v17, v{vLANE}",f"v_and_b32 v17, 3, v17",f"v_lshl_add_u32 v{vWQ}, v17, 4, v{vWQ}",
  f"s_lshl_b32 {sT0}, {sJ}, 6",f"v_add_u32 v{vWQ}, {sT0}, v{vWQ}")
e(f"s_mov_b32 {sL}, 0")
if OPT["stamp"]:
    for i in range(30): e(f"s_mov_b32 s{64+i}, 0")
stamp()
wq=dma_wq(); NE=OPT.get("ne",16)
if OPT.get("l0p",0): wq=[]; NE=0
e(f"s_mul_i32 s53, {sW}, {4*32*3072}",f"s_lshl_b32 s54, {sW}, 13"); NF=min(NE,OPT.get("nf",0)); e(*wq[:NF])
e(f"s_mov_b32 {sLB}, 0",f"s_mov_b32 {sPH}, 0",f"s_lshl_b32 s47, {sW}, 14",f"s_lshl_b32 s46, {sCB}, 16","s_add_u32 s46, s46, s47",f"s_add_u32 s46, s46, {PO}",f"s_mul_i32 s49, {sW}, 7168",f"s_mul_i32 s48, {sJ}, 114688","s_add_u32 s48, s48, s49",f"s_add_u32 s48, s48, {P1W}",
  f"s_lshl_b32 s50, {sCB}, 2",f"s_add_u32 s50, s50, {sW}","s_mul_i32 s50, s50, 57344",f"s_add_u32 s50, s50, {P2W}",f"s_lshl_b32 s51, {sW}, 12",f"s_mul_i32 s55, {sJ}, 98304","s_add_u32 s55, s55, s51",f"s_add_u32 s55, s55, {PQ}")
for i in range(4): e(f"s_add_u32 {sT0}, {sW}, {i}",f"s_and_b32 {sT0}, {sT0}, 3",f"s_mul_i32 s{[56,99,100,101][i]}, {sT0}, 57344")
def packpath(lab,loads,stores):
    e(f"{lab}:")
    for i,(pre,vo,srd) in enumerate(loads): e(pre,f"buffer_load_dwordx4 {V(64+4*i,4)}, v{vo}, {srd}, {sT3} offen")
    for i,pre in enumerate(stores): e(pre.replace(f"u32 {sT3},",f"u32 s{[2,3,4,5,6,7,98][i]},"))
    e(f"s_mov_b32 s97, {len(stores)}","s_branch Lpk")
for w in (1,2,3): e(f"s_cmp_eq_u32 {sW}, {w}",f"s_cbranch_scc1 Lpk{w}")
e(f"s_mul_i32 {sT0}, {sG}, {32*3072}",f"s_lshl_b32 {sT1}, {sG}, 11",f"s_add_u32 {sT1}, {sT1}, s55")
packpath("Lpk0a",[(f"s_add_u32 {sT3}, {sT0}, {16*ee*3072+p*1024}",vWQ,SWQ) for p in range(3) for ee in range(2)],[f"s_add_u32 {sT3}, {sT1}, {p*32768+ee*1024}" for p in range(3) for ee in range(2)])
e("Lpk1:")
e(f"s_mul_i32 {sT0}, {sJ}, 224")
for q in range(7):
    e(f"v_add_u32 v17, {64*q}, v{vLANE}",f"v_mul_u32_u24 v18, 4682, v17",f"v_lshrrev_b32 v18, 16, v18",f"v_mul_u32_u24 v{52+q}, {3584-224}, v18",f"v_lshl_add_u32 v{52+q}, v17, 4, v{52+q}",f"v_add_u32 v{52+q}, {sT0}, v{52+q}")
e(f"s_mul_i32 {sT3}, {sG}, 114688",f"s_mul_i32 {sT1}, {sG}, 7168",f"s_add_u32 {sT1}, {sT1}, s48",f"s_sub_u32 {sT1}, {sT1}, s49")
packpath("Lpk1a",[("",52+k,SW1) for k in range(7)],[f"s_add_u32 {sT3}, {sT1}, {k*1024}" for k in range(7)])
e("Lpk2:")
e(f"v_lshrrev_b32 v{vWA}, 3, v{vLANE}",f"v_lshlrev_b32 v{vWA}, 10, v{vWA}",f"v_lshlrev_b32 v17, 1, v{vG}",f"v_xor_b32 v17, v17, v{vLANE}",f"v_and_b32 v17, 7, v17",f"v_lshl_add_u32 v{vWA}, v17, 4, v{vWA}",f"s_lshl_b32 {sT0}, {sCB}, 7",f"v_add_u32 v{vWA}, {sT0}, v{vWA}")
e(f"s_lshl_b32 {sT0}, {sG}, 1",f"s_add_u32 {sT0}, {sT0}, {sHB}",f"s_mul_i32 {sT0}, {sT0}, {56*1024}",f"s_lshr_b32 {sT1}, {sG}, 2",f"s_sub_u32 {sT1}, {sT1}, 2",f"s_mul_i32 {sT1}, {sT1}, 57344",f"s_add_u32 {sT1}, {sT1}, s50",
  f"s_and_b32 {sT4}, {sG}, 3",f"s_lshl_b32 {sT2}, {sT4}, 11",f"s_add_u32 {sT2}, {sT2}, {49152-5120}",f"s_add_u32 {sT2}, {sT2}, {sT1}",f"s_mul_i32 {sT4}, {sT4}, 12288",f"s_add_u32 {sT1}, {sT1}, {sT4}",f"s_mul_i32 {sT4}, {sHB}, 7168",f"s_add_u32 {sT1}, {sT1}, {sT4}",
  f"s_cmp_eq_u32 {sHB}, 0",f"s_cselect_b32 {sT2}, {sT1}, {sT2}")
packpath("Lpk2a",[(f"s_add_u32 {sT3}, {sT0}, {k*8192}",vWA,SW2) for k in range(7)],[f"s_add_u32 {sT3}, {sT1 if k<5 else sT2}, {k*1024}" for k in range(7)])
e("Lpk3:")
e(f"v_lshrrev_b32 v{vWA}, 3, v{vLANE}",f"v_lshlrev_b32 v{vWA}, 10, v{vWA}",f"v_lshlrev_b32 v17, 1, v{vG}",f"v_xor_b32 v17, v17, v{vLANE}",f"v_and_b32 v17, 7, v17",f"v_lshl_add_u32 v{vWA}, v17, 4, v{vWA}",f"s_lshl_b32 {sT0}, {sCB}, 7",f"v_add_u32 v{vWA}, {sT0}, v{vWA}")
e(f"s_lshl_b32 {sT0}, {sG}, 1",f"s_add_u32 {sT0}, {sT0}, {sHB}",f"s_lshl_b32 {sT1}, {sT0}, 11",f"s_lshl_b32 {sT0}, {sT0}, 14",f"s_add_u32 {sT1}, {sT1}, s46",f"s_sub_u32 {sT1}, {sT1}, s47")
packpath("Lpk3a",[(f"s_add_u32 {sT3}, {sT0}, {k*8192}",vWA,SWO) for k in range(2)],[f"s_add_u32 {sT3}, {sT1}, {k*1024}" for k in range(2)])
e("Lpk:")
e(*wq[NF:NE])
e(f"v_lshlrev_b32 v{vL16}, 4, v{vLANE}",f"v_and_b32 v{vC8}, 3, v{vLANE}",f"v_lshlrev_b32 v{vC8}, 3, v{vC8}")
for i in range(4): e(f"v_mov_b32 v{vONES+i}, 0x3f803f80")
e(f"s_lshl_b32 {sT0}, {sG}, 8",f"s_add_u32 {sT0}, {sT0}, {FL_OFF}",f"v_and_b32 v17, 15, v{vLANE}",f"v_lshl_add_u32 v{vFL}, v17, 3, {sT0}",
  f"s_cmp_eq_u32 {sG}, 0",f"s_cselect_b32 {sT1}, 0, 256",f"v_and_b32 v17, 1, v{vG}",f"v_mul_u32_u24 v17, {sT1}, v17",f"v_sub_u32 v{vFL2}, v{vFL}, v17")
e(f"v_and_b32 v17, 15, v{vLANE}",f"v_lshlrev_b32 v60, 3, v17",f"v_lshl_add_u32 v60, v{vG}, 8, v60")
e(f"s_waitcnt vmcnt({NE-NF})")
for u in range(2):
    for i in range(2): e(f"v_permlane16_swap_b32 v{vRES+4*u+i}, v{vRES+4*u+2+i}")
xepi(None,XA_OFF,SA_OFF,0)
for i in range(7):
    if i in (2,6): e(f"s_cmp_le_u32 s97, {i}","s_cbranch_scc1 Lpks")
    e(f"buffer_store_dwordx4 {V(64+4*i,4)}, v{vL16}, {SWS}, s{[2,3,4,5,6,7,98][i]} offen sc1")
e("Lpks:")
e(f"s_cmp_lg_u32 {sW}, 0","s_cbranch_scc1 Lng","v_mov_b32 v19, 0",f"s_mov_b32 {sTO}, 0x40000","Lnp:",f"buffer_load_dwordx2 v[20:21], v19, {SDBG}, 0 offen sc1",f"s_sub_u32 {sTO}, {sTO}, 1","s_cbranch_scc1 Lend","s_waitcnt vmcnt(0)",
  "v_readfirstlane_b32 s44, v20","v_readfirstlane_b32 s45, v21","s_cmp_eq_u32 s45, 0","s_cbranch_scc1 Lnp","Lng:")
if wq and NE<24: e(f"s_mul_i32 s53, {sW}, {4*32*3072}",f"s_lshl_b32 s54, {sW}, 13"); e(*wq[NE:])
signal(len(wq)-NE,(),False)
e("Llayer:")
XM,XH=0,128; ACC=64; WF=136; CS1,CS3=200,228; CV=200; STV=228
e(f"v_and_b32 v17, 1, v{vG}",f"v_lshl_add_u32 v18, v{vR4}, 6, v{vC8}",f"v_lshl_add_u32 v32, v17, 5, v18",f"v_xor_b32 v33, 32, v32",f"v_add_u32 v34, 0x10000, v32",f"v_add_u32 v35, 0x10000, v33",
  f"s_lshr_b32 {sT0}, {sW}, 1",f"s_add_u32 {sT0}, {sT0}, 1",f"s_lshl_b32 {sT0}, {sT0}, 15",f"s_and_b32 {sT1}, {sW}, 1",f"s_lshl_b32 {sT1}, {sT1}, 5",f"v_xor_b32 v36, {sT1}, v32",f"v_add_u32 v36, {sT0}, v36")
e(f"v_and_b32 v17, 15, v{vLANE}",f"v_lshlrev_b32 v18, 2, v{vG}","v_sub_u32 v17, v17, v18",f"s_mov_b32 {sT0}, 0xf149f2ca",f"v_mov_b32 v19, {sT0}",f"s_or_b32 {sT1}, {sG}, {sW}",f"s_cmp_eq_u32 {sT1}, 0",f"s_cselect_b32 {sT1}, {sT0}, 0")
for i in range(4):
    e(f"v_subrev_u32 v18, {i}, v17","v_and_b32 v37, 0x80000001, v18","v_cmp_eq_u32 vcc, 0, v37",f"v_cndmask_b32_e64 v{40+i}, v19, 0, vcc",
      "v_cmp_eq_u32 vcc, 0x80000000, v37",f"v_cndmask_b32_e64 v{44+i}, v19, 0, vcc",f"v_add_f32 v{48+i}, {sT1}, v{44+i}")
e(f"s_add_u32 {sT1}, {sRT1}, {sLB}",f"s_add_u32 {sT1}, {sT1}, {XA_OFF}",f"v_add_u32 v24, {sT1}, v{vL16}","v_add_u32 v25, 0x4000, v24",
  f"s_lshr_b32 {sT1}, {sRT1}, 4",f"s_add_u32 {sT1}, {sT1}, {sLB}",f"s_add_u32 {sT1}, {sT1}, {SA_OFF}",f"v_add_u32 v27, {sT1}, v60",
  f"s_lshl_b32 {sT0}, {sG}, 17",f"s_add_u32 {sT1}, {sLB}, {XA_OFF-16384}",f"s_add_u32 {sT1}, {sT1}, {sT0}",f"s_lshr_b32 {sT0}, {sT0}, 4",f"s_add_u32 {sT0}, {sT0}, {sLB}",f"s_add_u32 {sT0}, {sT0}, {SA_OFF-1024}",
  f"s_cmp_eq_u32 {sG}, 0",f"s_cselect_b32 {sT1}, 0xffff0000, {sT1}",f"s_cselect_b32 {sT0}, 0xffff0000, {sT0}",f"v_add_u32 v26, {sT1}, v{vL16}",f"v_add_u32 v37, {sT0}, v60")
def p1_reads(s):
    b=WF+28*(s&1)
    return [tr(V(b+4*t+2*ee,2),ad,po+s*2048+ee*1024) for t,(ad,po) in enumerate(((32,0),(33,0),(32,32768),(33,32768),(34,0),(35,0),(36,0))) for ee in range(2)]
XB=79872
e(f"s_lshl_b32 {sT0}, {sW}, 11",f"s_add_u32 {sT0}, {sT0}, {XB}",f"v_lshl_add_u32 v61, v{vLANE}, 3, {sT0}",f"v_and_b32 v17, 15, v{vLANE}",f"v_lshlrev_b32 v17, 5, v17",f"v_lshl_add_u32 v17, v{vG}, 3, v17",f"v_add_u32 v62, {sT0}, v17",
  f"v_lshl_add_u32 v63, v{vR4}, 5, v{vC8}",f"v_add_u32 v63, {sT0}, v63",
  f"v_add_u32 v17, 9216, v17",f"v_lshlrev_b32 v38, 3, v{vLANE}",f"s_cmp_ge_u32 {sW}, 2","s_cselect_b64 vcc, -1, 0",f"s_and_b32 {sT0}, {sW}, 1",f"s_lshl_b32 {sT0}, {sT0}, 9","v_cndmask_b32 v38, v38, v17, vcc",f"s_add_u32 {sT0}, {sT0}, {XB}",f"v_add_u32 v38, {sT0}, v38")
stamp()
e(f"s_cmp_eq_u32 {sL}, 0","s_cbranch_scc1 Lna1")
for i in range(28): e(f"v_accvgpr_read_b32 v{CV+i}, a{CS1+i}")
if OPT.get("l0p",0):
    poll(vFL2); e("s_branch Lna2","Lna1:",f"v_lshlrev_b32 v18, 8, v{vR4}",f"v_lshl_add_u32 v18, v{vC8}, 2, v18",f"v_add_u32 v18, {FL_OFF}, v18")
    poll(18,4); e(*sum([dma_wq2(k) for k in range(6)],[])); e("Lna2:")
else: e("Lna1:"); poll(vFL2)
stamp()
class Q:
    def __init__(s): s.q=[]
    def add(s,tag,ins): s.q.append(tag); return ins
    def wait(s,tag): return len(s.q)-1-max(i for i,t in enumerate(s.q) if t==tag)
def xl(dst,ad,s): return (f"s_movk_i32 {sT4}, {(s>>2)*4096}\n" if s>=4 else "")+f"buffer_load_dwordx4 {dst}, v{ad}, {SWS}, {sT4 if s>=4 else 0} offen offset:{(s&3)*1024} sc1"
def stl(dst,ad,o): return [f"buffer_load_dwordx2 {V(dst+2*k,2)}, v{ad}, {SWS}, 0 offen offset:{o+128*k} sc1" for k in range(2)]
LA1=OPT.get("la1",3); q=Q()
HL=OPT.get("hl",0)
p1x=lambda s:[q.add(s,xl(A(r,4),ad,s)) for r,ad in ((XM+4*s,24),(XM+64+4*s,25),(XH+4*s,26))[:3-HL]] if s<16 else []
if HL:
    assert OPT.get("nwo",0)==0
    e("s_add_u32 m0, s51, 98304",f"v_add_u32 v39, 98304, v{vL16}")
    for k in range(4): e(f"buffer_load_dwordx4 v26, {SWS}, s51 offen offset:{k*1024} sc1 lds")
e(*p1x(0)); e(*[q.add("st",x) for x in stl(STV,27,0)+stl(STV+4,27,1024)+stl(STV+8,37,0)])
for s in range(1,LA1): e(*p1x(s))
NWO=OPT.get("nwo",0); wo=dma_wo()
e(f"s_cmp_eq_u32 {sL}, 0","s_cbranch_scc1 Lnwo"); e(*wo[:NWO]); e("Lnwo:")
if HL: e(f"s_waitcnt vmcnt({len(q.q)})","s_barrier"); e(*[f"ds_read_b128 {A(XH+4*k,4)}, v39 offset:{k*1024}" for k in range(16)])
cs_part(lambda s,ee:s*2048+ee*1024,CS1,"Lcp1",lambda:e("v_add_u32 v52, 0xffff8000, v36",f"s_and_b32 {sT0}, {sW}, 1",f"s_lshl_b32 {sT0}, {sT0}, 5",f"v_xor_b32 v53, {sT0}, v34"))
e(*p1_reads(0))
stv=sum([cap(stats,STV+4*m,STV+4*m+1,17+m) for m in range(3)],[]); stv=[stv[i+20*m] for i in range(20) for m in range(3)]
for s in range(16):
    b=WF+28*(s&1)
    vm=q.wait(s)
    mm=[[mfma(V(ACC+24*m+4*t,4),V(b+4*t,4),A(XM+64*m+4*s,4),V(ACC+24*m+4*t,4) if s else "0") for m in range(2)] for t in range(6)]
    mm.append([mfma(V(ACC+48,4),V(b+24,4),A(XH+4*s,4),V(ACC+48,4) if s else "0")])
    ld=p1x(s+LA1)
    if 4<=s<14: ld=merge(stv[:6],ld); stv=stv[6:]
    pstep(mm,p1_reads(s+1) if s<15 else [],ld,s==0,vm,s in(0,8))
assert not stv
stamp()
e(f"s_cmp_lg_u32 {sL}, 0","s_cbranch_scc1 Lpkb",f"v_lshlrev_b32 v18, 8, v{vR4}",f"v_lshl_add_u32 v18, v{vC8}, 2, v18",f"v_add_u32 v18, {FL_OFF}, v18")
e("s_barrier") if OPT.get("l0p",0) else poll(18,4)
e(*wo[:NWO]); e("s_branch Lpkd","Lpkb:","s_barrier","Lpkd:")
cs_fin(6,CS1,"Lcf1")
PK=120; XB=79872
n0=len(L)
def scale_tile(acc,cs,st,dst):
    e(pkfma(acc,cs,st),pkfma(acc+2,cs+2,st),pkmul(acc,acc,st,1),pkmul(acc+2,acc+2,st,1),f"v_cvt_pk_bf16_f32 v{dst}, v{acc}, v{acc+1}",f"v_cvt_pk_bf16_f32 v{dst+1}, v{acc+2}, v{acc+3}")
scale_tile(ACC+48,CV+24,STV+8,PK+24); e(f"ds_write_b64 v38, {V(PK+24,2)}")
for m in (1,0):
    for t in (2,3,4,5):
        scale_tile(ACC+24*m+4*t,CV+4*t,STV+4*m,PK+12*m+2*t)
        if t>=4: e(f"ds_write_b64 v62, {V(PK+12*m+2*t,2)} offset:{9216+((m+1)*2+t-4)*512}")
        elif m==1: e(f"ds_write_b64 v61, {V(PK+12*m+2*t,2)} offset:{(4+t-2)*512}")
e("s_waitcnt lgkmcnt(0)","s_barrier")
KP=148; VF=152
for h in range(2):
    e(f"ds_read_b64 {V(KP+2*h,2)}, v61 offset:{h*512}")
    for k in range(3): e(tr(V(VF+8*h+2*k,2),63,9216+(k*2+h)*512))
for m in range(2):
    for t in range(2): scale_tile(ACC+24*m+4*t,CV+4*t,STV+4*m,PK+12*m+2*t)
U=[(m,h) for m in range(2) for h in range(2)]
S=lambda u:168+16*u
def mf16(d,a,b,c): return f"v_mfma_f32_16x16x16_bf16 {d}, {a}, {b}, {c}"
for u,(m,h) in enumerate(U): e(mf16(V(S(u)+4,4),V(PK+12*m+4+2*h,2),V(PK+12*m+2*h,2),V(40,4)))
e("s_waitcnt lgkmcnt(0)")
for u,(m,h) in list(enumerate(U))[::-1]: e(mf16(V(S(u),4),V(KP+2*h,2) if m==0 else V(PK+4+2*h,2),V(PK+12*m+2*h,2),V(48 if m==0 else 44,4)))
def steps(f):
    for u in (3,2,1,0): e(*f(S(u),u))
steps(lambda s,u:[f"v_max3_f32 v{s+8}, v{s+4}, v{s+5}, v{s+6}",f"v_max3_f32 v{s+9}, v{s+7}, v{s}, v{s+1}"])
steps(lambda s,u:[f"v_max3_f32 v{s+8}, v{s+8}, v{s+2}, v{s+3}"])
steps(lambda s,u:[f"v_max_f32 v{s+8}, v{s+8}, v{s+9}"])
for sw in (16,32):
    steps(lambda s,u:[f"v_mov_b32 v{s+9}, v{s+8}"])
    steps(lambda s,u:[f"v_permlane{sw}_swap_b32 v{s+8}, v{s+9}"])
    steps(lambda s,u:[f"v_max_f32 v{s+8}, v{s+8}, v{s+9}"])
e(f"v_mov_b32 v20, 0x3eb8aa3b")
steps(lambda s,u:[f"v_mul_f32 v{s+8}, v20, v{s+8}"])
steps(lambda s,u:[f"v_pk_fma_f32 {V(s+2*i,2)}, {V(s+2*i,2)}, v[20:21], {V(s+8,2)} op_sel_hi:[1,0,0] neg_lo:[0,0,1] neg_hi:[0,0,1]" for i in range(4)]+[f"v_exp_f32 v{s+i}, v{s+i}" for i in range(8)])
steps(lambda s,u:[f"v_cvt_pk_bf16_f32 v{s+12+i}, v{s+2*i}, v{s+2*i+1}" for i in range(4)])
steps(lambda s,u:[mfma(V(s,4),V(VF+8*U[u][1]+2*U[u][0],4),V(s+12,4),"0"),mfma(V(s+4,4),V(vONES,4),V(s+12,4),"0")])
steps(lambda s,u:[f"v_rcp_f32 v{s+4}, v{s+4}"])
steps(lambda s,u:[pkmul(s+2*i,s+2*i,s+4,0) for i in range(2)])
steps(lambda s,u:[f"v_cvt_pk_bf16_f32 v{96+4*U[u][0]+2*U[u][1]+i}, v{s+2*i}, v{s+2*i+1}" for i in range(2)])
body=L[n0:]; del L[n0:]; e(*spread(body,wo[NWO:],0.0,0.5))
e(f"s_lshl_b32 {sT1}, {sJ}, 10",f"s_add_u32 {sT0}, {sRT1}, {sT1}",f"s_add_u32 {sT0}, {sT0}, {sLB}",f"s_add_u32 {sT1}, {sT0}, 0x4000")
e(f"buffer_store_dwordx4 {V(100,4)}, v{vL16}, {SWS}, {sT1} offen sc1",f"buffer_store_dwordx4 {V(96,4)}, v{vL16}, {SWS}, {sT0} offen sc1")
stamp()
w1=dma_w1(0)+dma_w1(1); e(*w1[:8]); signal(8); e(*w1[8:]); e(*dma_w1(2))
e(f"s_mov_b32 {sT2}, 98304"); rd128(sT2,32)
e(f"s_add_u32 {sT0}, {sRT2}, {sLB}",f"v_add_u32 v24, {sT0}, v{vL16}")
def wr2(s,t,c=4,o=0): return A(64+16*s+4*t+o,c) if s<8 else V(112+16*(s-8)+4*t+o,c)
e("s_waitcnt vmcnt(13)" if 0 else "")
for s in range(16): e(*[tr(wr2(s,t,2,2*ee),32+t,s*4096+ee*2048) for t in range(4) for ee in range(2)])
poll(vFL)
stamp()
for s in range(16): e(xl(A(4*s,4),24,s))
for s in range(16):
    e(f"s_waitcnt vmcnt({15-s})"+("" if s else " lgkmcnt(0)"))
    e(*[mfma(V(64+4*t,4),wr2(s,t),A(4*s,4),V(64+4*t,4) if s else "0") for t in range(4)])
stamp()
xepi(64,X1_OFF,S1_OFF,0)
e(*dma_w1(3)); signal(7)
e(*dma_w2((0,1,2)))
rd128('s51',40)
for t in range(4): e(f'v_add_u32 v{44+t}, 0x10000, v{40+t}',f'v_add_u32 v{48+t}, 0x20000, v{40+t}')
e(f"v_mul_u32_u24 v32, 224, v{vR4}",f"v_add_u32 v32, v32, v{vC8}",f"v_add_u32 v33, 57344, v32")
e(f"s_add_u32 {sT1}, {sRT1}, {sLB}",f"s_add_u32 {sT1}, {sT1}, {X1_OFF}",f"v_add_u32 v24, {sT1}, v{vL16}","v_add_u32 v25, 0x4000, v24",
  f"s_lshr_b32 {sT1}, {sRT1}, 4",f"s_add_u32 {sT1}, {sT1}, {sLB}",f"s_add_u32 {sT1}, {sT1}, {S1_OFF}",f"v_add_u32 v27, {sT1}, v60")
def p3_reads(s):
    b=WF+28*(s&1)
    return [tr(V(b+4*t+2*ee,2),32+(s>>3),(s&7)*7168+ee*3584+32*t) for t in range(7) for ee in range(2)]
e(f"s_cmp_eq_u32 {sL}, 0","s_cbranch_scc1 Lna3")
for i in range(28): e(f"v_accvgpr_read_b32 v{CV+i}, a{CS3+i}")
e("Lna3:")
poll(vFL)
stamp()
LA3=OPT.get("la3",4); q=Q(); AC=64
p3x=lambda s:[q.add(s,xl(A(64*m+4*s,4),24+m,s)) for m in range(2)] if s<16 else []
e(*p3x(0)); e(*[q.add("st",x) for x in stl(STV,27,0)+stl(STV+4,27,1024)])
for s in range(1,LA3): e(*p3x(s))
stv=sum([cap(stats,STV+4*m,STV+4*m+1,17+m)+[f"v_mul_f32 v{STV+4*m+2}, 0xbfb8aa3b, v{STV+4*m+1}"] for m in range(2)],[]); stv=[stv[i+21*m] for i in range(21) for m in range(2)]
PRE=128
def rd4a(b,off): return [tr(A(b+4*t+2*ee,2),40+(4+t if off<131072 else 8+t),(off&65535)+ee*2048) for t in range(4) for ee in range(2)]
cs_part(lambda s,ee:s*7168+ee*3584,CS3,"Lcp3",lambda:e(f"s_lshl_b32 {sT0}, {sW}, 5",f"v_add_u32 v52, {sT0}, v32",f"s_min_u32 {sT0}, {sT0}, 64",f"s_add_u32 {sT0}, {sT0}, 128",f"v_add_u32 v53, {sT0}, v32","v_add_u32 v54, 0x10000, v52","v_add_u32 v55, 0x10000, v53"))
for k in range(3): e(*rd4a(PRE+16*k,SLOT[k]*16384))
e(*p3_reads(0))
w2m={11:dma_w2((3,)),12:dma_w2((11,)),13:dma_w2((12,))}
for s in range(16):
    b=WF+28*(s&1)
    vm=q.wait(s)
    mm=[[mfma(V(AC+28*m+4*t,4),V(b+4*t,4),A(64*m+4*s,4),V(AC+28*m+4*t,4) if s else "0") for m in range(2)] for t in range(7)]
    ld=p3x(s+LA3)
    if s in w2m: ld+=[q.add("w",x) for x in w2m[s]]
    if 4<=s<11: ld=merge(stv[:6],ld); stv=stv[6:]
    pstep(mm,p3_reads(s+1) if s<15 else [],ld,s==0,vm,s in(0,8))
stamp()
assert not stv
e("s_waitcnt vmcnt(8)"); e(*rd4a(PRE+48,SLOT[3]*16384))
e("s_barrier")
cs_fin(7,CS3,"Lcf3")
n0=len(L)
e(f"s_lshr_b32 {sT0}, {sRT1}, 14",f"s_mul_i32 {sT0}, {sT0}, 57344",f"s_mul_i32 {sT1}, {sJ}, 3584",f"s_add_u32 {sT0}, {sT0}, {sT1}",f"s_add_u32 {sT0}, {sT0}, {sLB}",f"s_add_u32 {sT0}, {sT0}, {H_OFF}",f"v_lshlrev_b32 v34, 3, v{vLANE}")
for m in range(2):
    st=STV+4*m
    for t0 in (0,2,4,6):
        n=8 if t0<6 else 4; a=AC+28*m+4*t0; c=CV+4*t0; tm=160; pk=120+16*m+2*t0
        for i in range(0,n,2): e(pkfma(a+i,c+i,st))
        for i in range(0,n,2): e(pkmul(tm+i,a+i,st+2,0))
        for i in range(0,n,2): e(f"v_exp_f32 v{tm+i}, v{tm+i}",f"v_exp_f32 v{tm+i+1}, v{tm+i+1}",pkmul(a+i,a+i,st,1))
        for i in range(0,n,2): e(f"v_pk_add_f32 {V(tm+i,2)}, {V(tm+i,2)}, 1.0 op_sel_hi:[1,0]")
        for i in range(n): e(f"v_rcp_f32 v{tm+i}, v{tm+i}")
        for i in range(0,n,2): e(f"v_pk_mul_f32 {V(a+i,2)}, {V(a+i,2)}, {V(tm+i,2)}")
        for i in range(n//2): e(f"v_cvt_pk_bf16_f32 v{pk+i}, v{a+2*i}, v{a+2*i+1}")
        if t0<6: e(f"buffer_store_dwordx4 {V(pk,4)}, v{vL16}, {SWS}, {sT0} offen offset:{t0*512} sc1")
        else: e(f"buffer_store_dwordx2 {V(pk,2)}, v34, {SWS}, {sT0} offen offset:3072 sc1")
    if m==0: e(f"s_add_u32 {sT0}, {sT0}, 57344")
w2=dma_w2(range(4,11))+["s_waitcnt lgkmcnt(0)\n"+dma_w2((13,))[0]]+dma_w2((13,))[1:]; N2=OPT.get("n2",8); N3=OPT.get("n3",8)
body=L[n0:]; del L[n0:]; e(*spread(body,w2[:N2],0.0,0.8))
stamp()
e(*w2[N2:N2+N3]); signal(N3)
e(*w2[N2+N3:])
def rd4v(b,off): return [tr(V(b+4*t+2*ee,2),40+(t if off<65536 else 4+t if off<131072 else 8+t),(off&65535)+ee*2048) for t in range(4) for ee in range(2)]
e(f"s_lshr_b32 {sT0}, {sRT2}, 14",f"s_sub_u32 {sT0}, {sT0}, {sW}",f"s_mul_i32 {sT0}, {sT0}, 57344",f"s_mul_i32 {sT1}, {sW}, 14336",f"s_add_u32 {sT0}, {sT0}, {sT1}",f"s_add_u32 {sT0}, {sT0}, {sLB}",f"s_add_u32 {sT0}, {sT0}, {H_OFF}",
  f"v_add_u32 v36, {sT0}, v{vL16}",f"v_lshl_add_u32 v37, v{vLANE}, 3, {sT0}")
poll(vFL)
stamp()
def af(s,i,c=4,o=0):
    return A(((s%8)*4+i)*4+o,c)
q=Q(); LA4=OPT.get("la4",4)
def p4x(s):
    o=[]
    for i in range(4 if s<14 else 0):
        if s<12:
            jj,u=divmod(s,3); o.append(q.add(s,f"s_add_u32 {sT4}, s{[56,99,100,101][i]}, {jj*3584}\nbuffer_load_dwordx4 {af(s,i)}, v36, {SWS}, {sT4} offen offset:{u*1024} sc1"))
        else:
            for ee in range(2):
                jj=(s-12)*2+ee; o.append(q.add(s,f"s_add_u32 {sT4}, s{[56,99,100,101][i]}, {jj*3584}\nbuffer_load_dwordx2 {af(s,i,2,2*ee)}, v37, {SWS}, {sT4} offen offset:3072 sc1"))
    return o
for s in range(LA4): e(*p4x(s))
WB=lambda s: 232 if s&1 else 216
WR=lambda s,t: A(PRE+16*s+4*t,4) if s<4 else V(WB(s)+4*t,4)
for s in range(14):
    vm=q.wait(s)
    mm=[[mfma(V(64+16*i+4*t,4),WR(s,t),af(s,i),V(64+16*i+4*t,4) if s else "0") for i in range(4)] for t in range(4)]
    ld=p4x(s+LA4)
    pstep(mm,rd4v(WB(s+1),SLOT[s+1]*16384) if 3<=s<13 else [],ld,s<4,vm,s in(0,7))
stamp()
for i in range(1,4): e(f"s_add_u32 {sT0}, {sW}, {i}",f"s_and_b32 {sT0}, {sT0}, 3",f"s_mul_i32 {sT0}, {sT0}, 12288",f"s_add_u32 {sT0}, {sT0}, {98304+(i-1)*4096}",f"v_add_u32 v{16+i}, {sT0}, v{vL16}")
e(f"s_mul_i32 {sT0}, {sW}, 12288",f"s_add_u32 {sT0}, {sT0}, 98304",f"v_add_u32 v20, {sT0}, v{vL16}","s_barrier")
n0=len(L)
for i in range(1,4):
    for t in range(4): e(f"ds_write_b128 v{16+i}, {V(64+16*i+4*t,4)} offset:{t*1024}")
e("s_waitcnt lgkmcnt(0)","s_barrier")
for k in range(12): e(f"ds_read_b128 {V(128+4*k,4)}, v20 offset:{k*1024}")
e("s_waitcnt lgkmcnt(8)")
for i in range(8): e(f"v_pk_add_f32 {V(64+2*i,2)}, {V(64+2*i,2)}, {V(128+2*i,2)}")
e("s_waitcnt lgkmcnt(0)")
for i in range(8): e(f"v_pk_add_f32 {V(144+2*i,2)}, {V(144+2*i,2)}, {V(160+2*i,2)}")
for i in range(8): e(f"v_pk_add_f32 {V(128+2*i,2)}, {V(64+2*i,2)}, {V(144+2*i,2)}")
red=L[n0:]; del L[n0:]
e(f"s_cmp_lg_u32 {sL}, 0","s_cbranch_scc1 Lout")
wq=sum([dma_wq2(k) for k in range(6)],[]); N1=OPT.get("n1",4)
e(*spread(red,wq[:N1],0.0,0.4))
xepi(128,XA_OFF,SA_OFF,16*MB)
stamp()
e(*wq[N1:N1+10]); signal(10); e(*wq[N1+10:])
e(f"s_mov_b32 {sL}, 1",f"s_mov_b32 {sLB}, {16*MB}","s_branch Llayer")
e("Lout:")
e(*red)
xepi(128,0,0,0,False)
for u in range(2):
    for i in range(2): e(f"v_permlane16_swap_b32 v{vRES+4*u+i}, v{vRES+4*u+2+i}")
for u in range(2): e(f"buffer_store_dwordx4 {V(vRES+4*u,4)}, v59, {SOUT}, s52 offen offset:{u*64}"+(" sc1" if OPT.get("osc") else ""))
e("Lfin:","s_waitcnt vmcnt(0)")
if OPT["stamp"]:
    stamp()
    e(f"s_cmp_lg_u32 {sW}, 0","s_cbranch_scc1 Lend",f"s_lshl_b32 {sT0}, {sB}, 7",f"s_add_u32 {sT0}, {sT0}, {ST_OFF}","s_mov_b64 exec, 1","v_mov_b32 v18, 0")
    for i in range(30): e(f"v_mov_b32 v17, s{64+i}",f"buffer_store_dword v17, v18, {SWS}, {sT0} offen offset:{4*i}")
if OPT.get("dbgst"):
    e(f"s_cmp_lg_u32 {sB}, {OPT['dbgst']}","s_cbranch_scc1 Lend")
    for i in list(range(1,13))+[16,28]: e(f"s_sub_u32 s94, s{64+i}, s64","v_mov_b32 v17, s94",f"buffer_store_dword v17, v18, {SDBG}, 0 offen offset:{4*(min(i,13)+(i==28))+4}")
e("Lend:","s_endpgm")
K=NAME+"_kernel"
hdr=f"""; @launch grid=(256,1,1) block=(256,1,1) lds=163840
.amdgcn_target "amdgcn-amd-amdhsa--gfx950"
.text
.globl {K}
.p2align 8
.type {K},@function
{K}:
"""
ftr=f"""
.section .rodata,"a"
.p2align 6
.amdhsa_kernel {K}
  .amdhsa_next_free_vgpr 512
  .amdhsa_next_free_sgpr 102
  .amdhsa_accum_offset 256
  .amdhsa_group_segment_fixed_size 0
  .amdhsa_kernarg_size 72
  .amdhsa_user_sgpr_count 2
  .amdhsa_user_sgpr_kernarg_segment_ptr 1
  .amdhsa_system_sgpr_workgroup_id_x 1
.end_amdhsa_kernel
"""
open(sys.argv[1],"w").write(hdr+"\n".join(fix(L))+ftr)
print("stamps",nst[0],"lines",len(L))
```

```python
import sys
from asmlib import fix
NAME="interleave_layers__sliding_local_dilated__dense_activation_silu__prompt"
OPT=dict(stamp=0, stop=99, nodot=0)
for a in sys.argv[2:]:
    k,v=a.split("="); OPT[k]=int(v)
L=[]
def e(*x):
    for t in x:
        for u in t.split("\n"):
            u=u.strip()
            if u: L.append(u)
def V(n,c=1): return f"v{n}" if c==1 else f"v[{n}:{n+c-1}]"
def A(n,c=1): return f"a{n}" if c==1 else f"a[{n}:{n+c-1}]"
def merge(main,*fill):
    out=[]; n=len(main); pos=[0]*len(fill)
    for i,m in enumerate(main):
        out.append(m)
        for k,f in enumerate(fill):
            tgt=(len(f)*(i+1)+n-1)//n
            while pos[k]<min(tgt,len(f)): out.append(f[pos[k]]); pos[k]+=1
    return out
MB=1<<20
O_OFF,X1_OFF,H_OFF,XA_OFF,SA_OFF,S1_OFF,FL_OFF,ST_OFF=0,2*MB,4*MB,12*MB,14*MB,14*MB+262144,40*MB,41*MB
SX,SWQ,SWO,SW1,SW2,SWS,SOUT,SDBG="s[4:7]","s[8:11]","s[12:15]","s[16:19]","s[20:23]","s[24:27]","s[28:31]","s[32:35]"
sG,sJ,sW,sL="s36","s37","s38","s39"
sKS=40
sES,sT0,sT1,sT2,sLB,sPH,sHB,sCB="s56","s57","s58","s59","s60","s61","s62","s63"
sB="s96"; sONE="s97"; sTO="s98"
vLANE,vL16,vRES,vX1,vWQ,vFL,vFL2=0,1,2,10,11,12,13
vR4,vG,vC8=14,15,16
vONES=28
nst=[0]; skip=0
def stamp(x=False):
    global skip
    skip+=1
    if OPT.get('st4') and skip in (2,7,8,9,14): return
    if OPT["stamp"]:
        i=nst[0]; nst[0]+=1
        if i>=15: return
        e("s_memtime s[94:95]" if OPT.get("clk") else "s_memrealtime s[94:95]","s_waitcnt lgkmcnt(0)",f"s_cmp_eq_u32 {sL}, 0",f"s_cselect_b32 s{64+i}, s94, s{64+i}",f"s_cselect_b32 s{79+i}, s{79+i}, s94")
def signal(n=0,rb=(),st=True):
    lab=f"Lsig{len(L)}"
    e(f"s_waitcnt vmcnt({n})")
    if OPT.get("st3") and st: stamp()
    e("s_barrier",f"s_add_u32 {sPH}, {sPH}, 1",f"s_cmp_lg_u32 {sW}, 0",f"s_cbranch_scc1 {lab}",
      f"s_or_b32 {sT0}, s44, {sPH}",f"v_mov_b32 v22, {sT0}","v_mov_b32 v23, s45","s_mov_b64 exec, 1",f"s_lshl_b32 {sT1}, {sJ}, 3",f"buffer_store_dwordx2 v[22:23], v{vFL}, {SWS}, {sT1} offen sc1","s_mov_b64 exec, -1",f"{lab}:")
def poll(vaddr,n=1):
    lab=f"Lpoll{len(L)}"
    e(f"s_cmp_lg_u32 {sW}, 0",f"s_cbranch_scc1 {lab}x",f"s_mov_b32 {sTO}, 0x40000",f"s_or_b32 {sT0}, s44, {sPH}",f"s_sub_u32 {sT1}, 16, {sPH}",f"{lab}:")
    if n==4: e(f"buffer_load_dwordx4 v[248:251], v{vaddr}, {SWS}, 0 offen sc1",f"buffer_load_dwordx4 v[252:255], v{vaddr}, {SWS}, 0 offen offset:16 sc1")
    else: e(f"buffer_load_dwordx2 v[248:249], v{vaddr}, {SWS}, 0 offen sc1")
    e(f"s_sub_u32 {sTO}, {sTO}, 1","s_cbranch_scc1 Lend","s_waitcnt vmcnt(0)")
    for k in range(n):
        e(f"v_subrev_u32 v{248+2*k}, {sT0}, v{248+2*k}",f"v_xor_b32 v{249+2*k}, s45, v{249+2*k}")
        if k: e(f"v_max_u32 v248, v248, v{248+2*k}",f"v_or_b32 v249, v249, v{249+2*k}")
    e(f"v_cmp_gt_u32 vcc, {sT1}, v248","v_cmp_eq_u32 s[2:3], 0, v249","s_and_b64 vcc, vcc, s[2:3]","s_cmp_eq_u64 vcc, exec",f"s_cbranch_scc0 {lab}",f"{lab}x:","s_waitcnt vmcnt(0) lgkmcnt(0)","s_barrier")
def dma(vo,srd,so): e(f"buffer_load_dwordx4 v{vo}, {srd}, {so} offen lds")
def xsum(r,t,op="v_add_f32"):
    e(f"v_mov_b32 v{t}, v{r}",f"v_permlane16_swap_b32 v{r}, v{t}",f"{op} v{r}, v{r}, v{t}",f"v_mov_b32 v{t}, v{r}",f"v_permlane32_swap_b32 v{r}, v{t}",f"{op} v{r}, v{r}, v{t}")
def stats(su,sq,t):
    e(f"v_add_f32 v{su}, v{su}, v{su+2}",f"v_add_f32 v{sq}, v{sq}, v{sq+2}")
    xsum(su,t); xsum(sq,t)
    e(f"v_mul_f32 v{su}, 0x3b000000, v{su}",f"v_mul_f32 v{sq}, 0x3b000000, v{sq}",f"v_fma_f32 v{sq}, -v{su}, v{su}, v{sq}",f"v_max_f32 v{sq}, 0, v{sq}",
      f"v_add_f32 v{sq}, 0x3727c5ac, v{sq}",f"v_rsq_f32 v{sq}, v{sq}")
def mfma(d,a,b,c): return f"v_mfma_f32_16x16x32_bf16 {d}, {a}, {b}, {c}"
def tr(d,ad,off): return f"ds_read_b64_tr_b16 {d}, v{ad} offset:{off}"

sL2="0" if OPT.get("reuse",0) else sLB
sT3,sT4="s40","s41"
sRT2,sRT1="s42","s43"
vWA=10
def D(m0,so,vo,srd): return f"{m0}\n{so}\nbuffer_load_dwordx4 v{vo}, {srd}, {sT3} offen lds"
def dma_wq():
    return [D(f"s_add_u32 m0, s54, {p*32768+s*2048+ee*1024}",f"s_add_u32 {sT3}, s53, {(32*s+16*ee)*3072+p*1024}",vWQ,SWQ) for s in range(4) for ee in range(2) for p in range(3)]
PQ,PO,P1W,P2W=44*MB,46*MB,47*MB,50*MB
def PD(ldsb,lds,srcb,src,n):
    o=[]
    for i in range(n):
        pre=f"s_add_u32 m0, {ldsb}, {lds+i*1024}\ns_add_u32 {sT3}, {srcb}, {src+i*1024}\n" if i%4==0 else ""
        o.append(pre+f"buffer_load_dwordx4 v{vL16}, {SWS}, {sT3} offen offset:{(i%4)*1024} sc1 lds")
    return o
def dma_wo(): return PD("s47",98304,"s46",0,16)
def dma_w1(k): return PD("s49",k*28672,"s48",k*28672,7)
SLOT={0:7,1:8,2:9,3:7,11:8,12:9,13:7,**{4+k:k for k in range(7)}}
def dma_w2(steps): return [x for st in steps for x in PD("s51",SLOT[st]*16384,"s50",st*4096,4)]
def dma_wq2(k): return PD("s51",k*16384,"s55",k*16384,4)
def rd128(base,v0):
    e(f"v_lshrrev_b32 v17, 1, v{vR4}",f"v_and_b32 v17, 3, v17",f"v_lshl_add_u32 v18, v{vR4}, 7, v{vC8}",f"v_add_u32 v18, {base}, v18")
    for t in range(4): e(f"v_xor_b32 v{v0+t}, {t}, v17",f"v_lshl_add_u32 v{v0+t}, v{v0+t}, 5, v18")
def cap(f,*a):
    n=len(L); f(*a); r=L[n:]; del L[n:]; return r
def spread(main,fill,lo=0.0,hi=1.0):
    m2=[]
    for x in main:
        if m2 and m2[-1].split("\n")[-1].startswith("s_cmp"): m2[-1]+="\n"+x
        else: m2.append(x)
    main=m2
    n=len(main); a=int(n*lo); b=max(a+1,int(n*hi)); return main[:a]+merge(main[a:b],fill)+main[b:]
def pkfma(a,c,mean): return f"v_pk_fma_f32 {V(a,2)}, {V(mean,2)}, {V(c,2)}, {V(a,2)} op_sel_hi:[0,1,1] neg_lo:[1,0,0] neg_hi:[1,0,0]"
def pkmul(d,a,pair,hi): return f"v_pk_mul_f32 {V(d,2)}, {V(a,2)}, {V(pair,2)} "+("op_sel:[0,1] op_sel_hi:[1,1]" if hi else "op_sel_hi:[1,0]")
def xepi(acc,xoff,soff,nxt,st=True):
    for k in range(8):
        r=vRES+k
        e(f"v_lshlrev_b32 v{96+2*k}, 16, v{r}",f"v_and_b32 v{97+2*k}, 0xffff0000, v{r}")
        if acc is not None: e(f"v_pk_add_f32 {V(96+2*k,2)}, {V(96+2*k,2)}, {V(acc+2*k,2)}",f"v_cvt_pk_bf16_f32 v{r}, v{96+2*k}, v{97+2*k}")
    if not st: return
    e(f"s_lshl_b32 {sT1}, {sCB}, 11",f"s_add_u32 {sT1}, {sT1}, {sRT2}",f"s_add_u32 {sT1}, {sT1}, {sL2}",f"s_add_u32 s53, {sT1}, {xoff+nxt}")
    for u in range(2): e(f"buffer_store_dwordx4 {V(vRES+4*u,4)}, v{vL16}, {SWS}, s53 offen offset:{u*1024} sc1")
    e(f"v_pk_mul_f32 v[20:21], v[96:97], v[96:97]")
    for k in range(1,8): e(f"v_pk_fma_f32 v[20:21], {V(96+2*k,2)}, {V(96+2*k,2)}, v[20:21]",f"v_pk_add_f32 v[96:97], v[96:97], {V(96+2*k,2)}")
    e("v_add_f32 v21, v20, v21","v_add_f32 v20, v96, v97")
    xsum(20,17); xsum(21,18)
    e(f"s_lshr_b32 {sT1}, {sRT2}, 4",f"s_lshl_b32 {sT0}, {sCB}, 7",f"s_add_u32 {sT1}, {sT1}, {sT0}",f"s_add_u32 {sT1}, {sT1}, {sL2}",f"s_add_u32 s54, {sT1}, {soff+nxt}",f"v_lshlrev_b32 v17, 3, v{vLANE}",
      "s_mov_b64 exec, 0xffff",f"buffer_store_dwordx2 v[20:21], v17, {SWS}, s54 offen sc1","s_mov_b64 exec, -1")
XRB=[f"buffer_load_dwordx4 v[248:251], v{vL16}, {SWS}, s53 offen offset:{u*1024} sc1" for u in range(2)]+[f"v_and_b32 v17, 0x70, v{vL16}",f"buffer_load_dwordx4 v[248:251], v17, {SWS}, s54 offen sc1"]
def cs_part(off,cs,lab,pre):
    e(f"s_cmp_lg_u32 {sL}, 0",f"s_cbranch_scc1 {lab}"); pre()
    rd=lambda s:[tr(V(WF+8*(s%6)+4*t+2*ee,2),52+t+2*(off(s,ee)>>16),off(s,ee)&65535) for t in range(2) for ee in range(2)]
    for s in range(3): e(*rd(s))
    for s in range(16):
        e(f"s_waitcnt lgkmcnt({4*min(2,15-s)})")
        e(*[mfma(A(cs+4*t,4),V(WF+8*(s%6)+4*t,4),V(vONES,4),A(cs+4*t,4) if s else "0") for t in range(2)])
        if s+3<16: e(*rd(s+3))
    e(f"{lab}:")
def cs_fin(nt,cs,lab):
    e(f"s_cmp_lg_u32 {sL}, 0",f"s_cbranch_scc1 {lab}")
    e(f"v_lshlrev_b32 v17, 4, v{vG}",f"s_lshl_b32 {sT0}, {sW}, 6",f"v_add_u32 v19, {sT0}, v17","s_mov_b32 exec_lo, 0x10001","s_mov_b32 exec_hi, 0x10001")
    e(f"ds_write_b128 v19, {A(cs,4)}",f"ds_write_b128 v19, {A(cs+4,4)} offset:256","s_mov_b64 exec, -1","s_waitcnt lgkmcnt(0)","s_barrier")
    for R in (V,A):
        for t in range(7): e(f"ds_read_b128 {R((CV if R is V else cs)+4*t,4)}, v{19 if t>=nt else 17} offset:{128 if t>=nt else t*64}")
    e("s_waitcnt lgkmcnt(0)")
    if nt==7: e("s_barrier")
    e(f"{lab}:")
def pstep(groups,nxt,ld,first,vm,later):
    nt=len(groups); out=[]; k=0
    for t,g in enumerate(groups):
        if first: w=f"s_waitcnt vmcnt({vm}) lgkmcnt(0)" if t==0 else None
        else:
            n=2*(nt-1-t)+(2*t if nxt else 0)
            if OPT.get("hw",1): n=max(0,n-2) if t+1<nt else n
            w=(f"s_waitcnt vmcnt({vm}) lgkmcnt({n})" if t==0 else f"s_waitcnt lgkmcnt({n})" if not(OPT.get("hw",1) and t&1) else None)
        if w: out.append(w)
        if t==0 and later and OPT.get("st4"): out+=cap(stamp,True); out.append("s_nop 0")
        r=nxt[2*t:2*t+2] if nxt else []
        tgt=(len(ld)*(t+1)+nt-1)//nt; l=ld[k:tgt]; k=max(k,tgt)
        out+=merge(g,r,l)
    e(*out)
e(f"s_cmp_ge_u32 s2, 256","s_cbranch_scc1 Lend",f"s_mov_b32 {sB}, s2")
e("s_load_dwordx2 s[4:5], s[0:1], 0","s_load_dwordx2 s[8:9], s[0:1], 8","s_load_dwordx2 s[12:13], s[0:1], 16","s_load_dwordx2 s[16:17], s[0:1], 32","s_load_dwordx2 s[20:21], s[0:1], 40",
  "s_load_dwordx2 s[24:25], s[0:1], 64","s_load_dwordx2 s[28:29], s[0:1], 48","s_load_dwordx2 s[32:33], s[0:1], 56")
for b,n in ((4,2*MB),(8,512*3072),(12,512*1024),(16,512*3584),(20,1792*1024),(24,64*MB),(28,2*MB),(32,256)):
    e(f"s_mov_b32 s{b+2}, {n}",f"s_mov_b32 s{b+3}, 0x20000")
e(f"v_lshrrev_b32 v17, 6, v0",f"v_and_b32 v{vLANE}, 63, v0",f"v_readfirstlane_b32 {sW}, v17",
  f"s_and_b32 {sT0}, s2, 7",f"s_lshr_b32 {sT1}, s2, 3",f"s_and_b32 {sJ}, {sT1}, 15",f"s_lshr_b32 {sT1}, {sT1}, 4",f"s_lshl_b32 {sG}, {sT0}, 1",f"s_add_u32 {sG}, {sG}, {sT1}",
  f"s_lshr_b32 {sHB}, {sJ}, 3",f"s_and_b32 {sCB}, {sJ}, 7",
  f"s_lshl_b32 {sT0}, {sG}, 3",f"s_lshl_b32 {sT1}, {sHB}, 2",f"s_add_u32 {sT1}, {sT1}, {sT0}",f"s_add_u32 {sT1}, {sT1}, {sW}",f"s_lshl_b32 {sRT2}, {sT1}, 14",f"s_lshl_b32 {sT1}, {sW}, 1",f"s_add_u32 {sT1}, {sT1}, {sT0}",f"s_lshl_b32 {sRT1}, {sT1}, 14")
e(f"v_lshrrev_b32 v{vG}, 4, v{vLANE}",f"v_and_b32 v17, 15, v{vLANE}",f"v_lshlrev_b32 v59, 10, v17",f"v_and_b32 v18, 1, v{vG}",f"v_lshl_add_u32 v59, v18, 5, v59",f"v_lshrrev_b32 v18, 1, v{vG}",f"v_lshl_add_u32 v59, v18, 4, v59",
  f"s_lshl_b32 {sT1}, {sCB}, 7",f"s_add_u32 s52, {sRT2}, {sT1}","s_waitcnt lgkmcnt(0)")
for u in range(2): e(f"buffer_load_dwordx4 {V(vRES+4*u,4)}, v59, {SX}, s52 offen offset:{u*64}")
e(f"s_or_b32 {sT0}, s2, {sW}",f"s_cmp_lg_u32 {sT0}, 0","s_cbranch_scc1 Lnn","s_memrealtime s[44:45]","v_mov_b32 v19, 0","s_waitcnt lgkmcnt(0)","s_lshl_b64 s[44:45], s[44:45], 4","s_or_b32 s45, s45, 0x40000000","v_mov_b32 v20, s44","v_mov_b32 v21, s45",
  "s_mov_b64 exec, 1",f"buffer_store_dwordx2 v[20:21], v19, {SDBG}, 0 offen sc1","s_mov_b64 exec, -1","Lnn:")
e(f"v_lshrrev_b32 v{vR4}, 2, v{vLANE}",f"v_mul_u32_u24 v{vWQ}, 3072, v{vR4}",f"v_and_b32 v17, 1, v{vG}",f"v_lshlrev_b32 v17, 1, v17",f"v_xor_b32 v17, v17, v{vLANE}",f"v_and_b32 v17, 3, v17",f"v_lshl_add_u32 v{vWQ}, v17, 4, v{vWQ}",
  f"s_lshl_b32 {sT0}, {sJ}, 6",f"v_add_u32 v{vWQ}, {sT0}, v{vWQ}")
e(f"s_mov_b32 {sL}, 0")
if OPT["stamp"]:
    for i in range(30): e(f"s_mov_b32 s{64+i}, 0")
stamp()
wq=dma_wq(); NE=OPT.get("ne",0)
if OPT.get("l0p",0): wq=[]; NE=0
e(f"s_mul_i32 s53, {sW}, {4*32*3072}",f"s_lshl_b32 s54, {sW}, 13"); NF=min(NE,OPT.get("nf",0)); e(*wq[:NF])
if OPT.get("pf",0):
    e(f"s_lshr_b32 {sT0}, {sB}, 3",f"s_lshl_b32 {sT0}, {sT0}, 2",f"s_add_u32 {sT0}, {sT0}, {sW}",f"s_mul_i32 {sT0}, {sT0}, 12288",f"v_lshlrev_b32 v17, 4, v{vLANE}")
    for k in range(12):
        e(f"buffer_load_dwordx4 {V(112+4*k,4)}, v17, {SWQ}, {sT0} offen offset:{(k&3)*1024}")
        if k&3==3: e(f"s_addk_i32 {sT0}, 0x1000")
e(f"s_mov_b32 {sLB}, 0",f"s_mov_b32 {sPH}, 0",f"s_lshl_b32 s47, {sW}, 14",f"s_lshl_b32 s46, {sCB}, 16","s_add_u32 s46, s46, s47",f"s_add_u32 s46, s46, {PO}",f"s_mul_i32 s49, {sW}, 7168",f"s_mul_i32 s48, {sJ}, 114688","s_add_u32 s48, s48, s49",f"s_add_u32 s48, s48, {P1W}",
  f"s_lshl_b32 s50, {sCB}, 2",f"s_add_u32 s50, s50, {sW}","s_mul_i32 s50, s50, 57344",f"s_add_u32 s50, s50, {P2W}",f"s_lshl_b32 s51, {sW}, 12",f"s_mul_i32 s55, {sJ}, 98304","s_add_u32 s55, s55, s51",f"s_add_u32 s55, s55, {PQ}")
for i in range(4): e(f"s_add_u32 {sT0}, {sW}, {i}",f"s_and_b32 {sT0}, {sT0}, 3",f"s_mul_i32 s{[56,99,100,101][i]}, {sT0}, 57344")
def packpath(lab,loads,stores):
    e(f"{lab}:")
    for i,(pre,vo,srd) in enumerate(loads): e(pre,f"buffer_load_dwordx4 {V(64+4*i,4)}, v{vo}, {srd}, {sT3} offen")
    for i,pre in enumerate(stores): e(pre.replace(f"u32 {sT3},",f"u32 s{[2,3,4,5,6,7,98][i]},"))
    e(f"s_mov_b32 s97, {len(stores)}","s_branch Lpk")
for w in (1,2,3): e(f"s_cmp_eq_u32 {sW}, {w}",f"s_cbranch_scc1 Lpk{w}")
e(f"s_mul_i32 {sT0}, {sG}, {32*3072}",f"s_lshl_b32 {sT1}, {sG}, 11",f"s_add_u32 {sT1}, {sT1}, s55")
packpath("Lpk0a",[(f"s_add_u32 {sT3}, {sT0}, {16*ee*3072+p*1024}",vWQ,SWQ) for p in range(3) for ee in range(2)],[f"s_add_u32 {sT3}, {sT1}, {p*32768+ee*1024}" for p in range(3) for ee in range(2)])
e("Lpk1:")
e(f"s_mul_i32 {sT0}, {sJ}, 224")
for q in range(7):
    e(f"v_add_u32 v17, {64*q}, v{vLANE}",f"v_mul_u32_u24 v18, 4682, v17",f"v_lshrrev_b32 v18, 16, v18",f"v_mul_u32_u24 v{52+q}, {3584-224}, v18",f"v_lshl_add_u32 v{52+q}, v17, 4, v{52+q}",f"v_add_u32 v{52+q}, {sT0}, v{52+q}")
e(f"s_mul_i32 {sT3}, {sG}, 114688",f"s_mul_i32 {sT1}, {sG}, 7168",f"s_add_u32 {sT1}, {sT1}, s48",f"s_sub_u32 {sT1}, {sT1}, s49")
packpath("Lpk1a",[("",52+k,SW1) for k in range(7)],[f"s_add_u32 {sT3}, {sT1}, {k*1024}" for k in range(7)])
e("Lpk2:")
e(f"v_lshrrev_b32 v{vWA}, 3, v{vLANE}",f"v_lshlrev_b32 v{vWA}, 10, v{vWA}",f"v_lshlrev_b32 v17, 1, v{vG}",f"v_xor_b32 v17, v17, v{vLANE}",f"v_and_b32 v17, 7, v17",f"v_lshl_add_u32 v{vWA}, v17, 4, v{vWA}",f"s_lshl_b32 {sT0}, {sCB}, 7",f"v_add_u32 v{vWA}, {sT0}, v{vWA}")
e(f"s_lshl_b32 {sT0}, {sG}, 1",f"s_add_u32 {sT0}, {sT0}, {sHB}",f"s_mul_i32 {sT0}, {sT0}, {56*1024}",f"s_lshr_b32 {sT1}, {sG}, 2",f"s_sub_u32 {sT1}, {sT1}, 2",f"s_mul_i32 {sT1}, {sT1}, 57344",f"s_add_u32 {sT1}, {sT1}, s50",
  f"s_and_b32 {sT4}, {sG}, 3",f"s_lshl_b32 {sT2}, {sT4}, 11",f"s_add_u32 {sT2}, {sT2}, {49152-5120}",f"s_add_u32 {sT2}, {sT2}, {sT1}",f"s_mul_i32 {sT4}, {sT4}, 12288",f"s_add_u32 {sT1}, {sT1}, {sT4}",f"s_mul_i32 {sT4}, {sHB}, 7168",f"s_add_u32 {sT1}, {sT1}, {sT4}",
  f"s_cmp_eq_u32 {sHB}, 0",f"s_cselect_b32 {sT2}, {sT1}, {sT2}")
packpath("Lpk2a",[(f"s_add_u32 {sT3}, {sT0}, {k*8192}",vWA,SW2) for k in range(7)],[f"s_add_u32 {sT3}, {sT1 if k<5 else sT2}, {k*1024}" for k in range(7)])
e("Lpk3:")
e(f"v_lshrrev_b32 v{vWA}, 3, v{vLANE}",f"v_lshlrev_b32 v{vWA}, 10, v{vWA}",f"v_lshlrev_b32 v17, 1, v{vG}",f"v_xor_b32 v17, v17, v{vLANE}",f"v_and_b32 v17, 7, v17",f"v_lshl_add_u32 v{vWA}, v17, 4, v{vWA}",f"s_lshl_b32 {sT0}, {sCB}, 7",f"v_add_u32 v{vWA}, {sT0}, v{vWA}")
e(f"s_lshl_b32 {sT0}, {sG}, 1",f"s_add_u32 {sT0}, {sT0}, {sHB}",f"s_lshl_b32 {sT1}, {sT0}, 11",f"s_lshl_b32 {sT0}, {sT0}, 14",f"s_add_u32 {sT1}, {sT1}, s46",f"s_sub_u32 {sT1}, {sT1}, s47")
packpath("Lpk3a",[(f"s_add_u32 {sT3}, {sT0}, {k*8192}",vWA,SWO) for k in range(2)],[f"s_add_u32 {sT3}, {sT1}, {k*1024}" for k in range(2)])
e("Lpk:")
if OPT.get("st5"): stamp()
e(*wq[NF:NE])
if OPT.get("st5"): stamp()
e(f"v_lshlrev_b32 v{vL16}, 4, v{vLANE}",f"v_and_b32 v{vC8}, 3, v{vLANE}",f"v_lshlrev_b32 v{vC8}, 3, v{vC8}")
for i in range(4): e(f"v_mov_b32 v{vONES+i}, 0x3f803f80")
e(f"s_lshl_b32 {sT0}, {sG}, 8",f"s_add_u32 {sT0}, {sT0}, {FL_OFF}",f"v_and_b32 v17, 15, v{vLANE}",f"v_lshl_add_u32 v{vFL}, v17, 3, {sT0}",
  f"s_cmp_eq_u32 {sG}, 0",f"s_cselect_b32 {sT1}, 0, 256",f"v_and_b32 v17, 1, v{vG}",f"v_mul_u32_u24 v17, {sT1}, v17",f"v_sub_u32 v{vFL2}, v{vFL}, v17")
e(f"v_and_b32 v17, 15, v{vLANE}",f"v_lshlrev_b32 v60, 3, v17",f"v_lshl_add_u32 v60, v{vG}, 8, v60")
if OPT.get("st5"): stamp()
e(f"s_waitcnt vmcnt({NE-NF})")
if OPT.get("st5"): stamp()
for u in range(2):
    for i in range(2): e(f"v_permlane16_swap_b32 v{vRES+4*u+i}, v{vRES+4*u+2+i}")
xepi(None,XA_OFF,SA_OFF,0)
for i in range(7):
    if i in (2,6): e(f"s_cmp_le_u32 s97, {i}","s_cbranch_scc1 Lpks")
    e(f"buffer_store_dwordx4 {V(64+4*i,4)}, v{vL16}, {SWS}, s{[2,3,4,5,6,7,98][i]} offen sc1")
e("Lpks:")
if OPT.get("st5"): stamp()
e(f"s_cmp_lg_u32 {sW}, 0","s_cbranch_scc1 Lng","v_mov_b32 v19, 0",f"s_mov_b32 {sTO}, 0x40000","Lnp:",f"buffer_load_dwordx2 v[20:21], v19, {SDBG}, 0 offen sc1",f"s_sub_u32 {sTO}, {sTO}, 1","s_cbranch_scc1 Lend","s_waitcnt vmcnt(0)",
  "v_readfirstlane_b32 s44, v20","v_readfirstlane_b32 s45, v21","s_cmp_eq_u32 s45, 0","s_cbranch_scc1 Lnp","Lng:")
if OPT.get("st5"): stamp()
if OPT.get("st5"): stamp()
signal(0,(),False)
if wq and NE<24: e(f"s_mul_i32 s53, {sW}, {4*32*3072}",f"s_lshl_b32 s54, {sW}, 13"); e(*wq[NE:])
if OPT.get("st5"): stamp()
e("Llayer:")
XM,XH=0,128; ACC=64; WF=136; CS1,CS3=200,228; CV=200; STV=228
e(f"v_and_b32 v17, 1, v{vG}",f"v_lshl_add_u32 v18, v{vR4}, 6, v{vC8}",f"v_lshl_add_u32 v32, v17, 5, v18",f"v_xor_b32 v33, 32, v32",f"v_add_u32 v34, 0x10000, v32",f"v_add_u32 v35, 0x10000, v33",
  f"s_lshr_b32 {sT0}, {sW}, 1",f"s_add_u32 {sT0}, {sT0}, 1",f"s_lshl_b32 {sT0}, {sT0}, 15",f"s_and_b32 {sT1}, {sW}, 1",f"s_lshl_b32 {sT1}, {sT1}, 5",f"v_xor_b32 v36, {sT1}, v32",f"v_add_u32 v36, {sT0}, v36")
e(f"v_and_b32 v17, 15, v{vLANE}",f"v_lshlrev_b32 v18, 2, v{vG}","v_sub_u32 v17, v17, v18",f"s_mov_b32 {sT0}, 0xf149f2ca",f"v_mov_b32 v19, {sT0}",f"s_or_b32 {sT1}, {sG}, {sW}",f"s_cmp_eq_u32 {sT1}, 0",f"s_cselect_b32 {sT1}, {sT0}, 0")
for i in range(4):
    e(f"v_subrev_u32 v18, {i}, v17","v_and_b32 v37, 0x80000001, v18","v_cmp_eq_u32 vcc, 0, v37",f"v_cndmask_b32_e64 v{40+i}, v19, 0, vcc",
      "v_cmp_eq_u32 vcc, 0x80000000, v37",f"v_cndmask_b32_e64 v{44+i}, v19, 0, vcc",f"v_add_f32 v{48+i}, {sT1}, v{44+i}")
e(f"s_add_u32 {sT1}, {sRT1}, {sLB}",f"s_add_u32 {sT1}, {sT1}, {XA_OFF}",f"v_add_u32 v24, {sT1}, v{vL16}","v_add_u32 v25, 0x4000, v24",
  f"s_lshr_b32 {sT1}, {sRT1}, 4",f"s_add_u32 {sT1}, {sT1}, {sLB}",f"s_add_u32 {sT1}, {sT1}, {SA_OFF}",f"v_add_u32 v27, {sT1}, v60",
  f"s_lshl_b32 {sT0}, {sG}, 17",f"s_add_u32 {sT1}, {sLB}, {XA_OFF-16384}",f"s_add_u32 {sT1}, {sT1}, {sT0}",f"s_lshr_b32 {sT0}, {sT0}, 4",f"s_add_u32 {sT0}, {sT0}, {sLB}",f"s_add_u32 {sT0}, {sT0}, {SA_OFF-1024}",
  f"s_cmp_eq_u32 {sG}, 0",f"s_cselect_b32 {sT1}, 0xffff0000, {sT1}",f"s_cselect_b32 {sT0}, 0xffff0000, {sT0}",f"v_add_u32 v26, {sT1}, v{vL16}",f"v_add_u32 v37, {sT0}, v60")
def p1_reads(s):
    b=WF+28*(s&1)
    return [tr(V(b+4*t+2*ee,2),ad,po+s*2048+ee*1024) for t,(ad,po) in enumerate(((32,0),(33,0),(32,32768),(33,32768),(34,0),(35,0),(36,0))) for ee in range(2)]
XB=79872
e(f"s_lshl_b32 {sT0}, {sW}, 11",f"s_add_u32 {sT0}, {sT0}, {XB}",f"v_lshl_add_u32 v61, v{vLANE}, 3, {sT0}",f"v_and_b32 v17, 15, v{vLANE}",f"v_lshlrev_b32 v17, 5, v17",f"v_lshl_add_u32 v17, v{vG}, 3, v17",f"v_add_u32 v62, {sT0}, v17",
  f"v_lshl_add_u32 v63, v{vR4}, 5, v{vC8}",f"v_add_u32 v63, {sT0}, v63",
  f"v_add_u32 v17, 9216, v17",f"v_lshlrev_b32 v38, 3, v{vLANE}",f"s_cmp_ge_u32 {sW}, 2","s_cselect_b64 vcc, -1, 0",f"s_and_b32 {sT0}, {sW}, 1",f"s_lshl_b32 {sT0}, {sT0}, 9","v_cndmask_b32 v38, v38, v17, vcc",f"s_add_u32 {sT0}, {sT0}, {XB}",f"v_add_u32 v38, {sT0}, v38")
stamp()
e(f"s_cmp_eq_u32 {sL}, 0","s_cbranch_scc1 Lna1")
for i in range(28): e(f"v_accvgpr_read_b32 v{CV+i}, a{CS1+i}")
if OPT.get("l0p",0):
    poll(vFL2); e("s_branch Lna2","Lna1:",f"v_lshlrev_b32 v18, 8, v{vR4}",f"v_lshl_add_u32 v18, v{vC8}, 2, v18",f"v_add_u32 v18, {FL_OFF}, v18")
    poll(18,4); e(*sum([dma_wq2(k) for k in range(6)],[])); e("Lna2:")
else: e("Lna1:"); poll(vFL2)
stamp()
class Q:
    def __init__(s): s.q=[]
    def add(s,tag,ins): s.q.append(tag); return ins
    def wait(s,tag): return len(s.q)-1-max(i for i,t in enumerate(s.q) if t==tag)
def xl(dst,ad,s): return (f"s_movk_i32 {sT4}, {(s>>2)*4096}\n" if s>=4 else "")+f"buffer_load_dwordx4 {dst}, v{ad}, {SWS}, {sT4 if s>=4 else 0} offen offset:{(s&3)*1024} sc1"
def stl(dst,ad,o): return [f"buffer_load_dwordx2 {V(dst+2*k,2)}, v{ad}, {SWS}, 0 offen offset:{o+128*k} sc1" for k in range(2)]
LA1=OPT.get("la1",3); q=Q()
HL=OPT.get("hl",0)
p1x=lambda s:[q.add(s,xl(A(r,4),ad,s)) for r,ad in ((XM+4*s,24),(XM+64+4*s,25),(XH+4*s,26))[:3-HL]] if s<16 else []
if HL:
    assert OPT.get("nwo",0)==0
    e("s_add_u32 m0, s51, 98304",f"v_add_u32 v39, 98304, v{vL16}")
    for k in range(4): e(f"buffer_load_dwordx4 v26, {SWS}, s51 offen offset:{k*1024} sc1 lds")
e(*p1x(0)); e(*[q.add("st",x) for x in stl(STV,27,0)+stl(STV+4,27,1024)+stl(STV+8,37,0)])
for s in range(1,LA1): e(*p1x(s))
NWO=OPT.get("nwo",0); wo=dma_wo()
e(f"s_cmp_eq_u32 {sL}, 0","s_cbranch_scc1 Lnwo"); e(*wo[:NWO]); e("Lnwo:")
if HL: e(f"s_waitcnt vmcnt({len(q.q)})","s_barrier"); e(*[f"ds_read_b128 {A(XH+4*k,4)}, v39 offset:{k*1024}" for k in range(16)])
cs_part(lambda s,ee:s*2048+ee*1024,CS1,"Lcp1",lambda:e(f"s_waitcnt vmcnt({len(q.q)})\ns_barrier" if OPT.get("l0p",0) else "","v_add_u32 v52, 0xffff8000, v36",f"s_and_b32 {sT0}, {sW}, 1",f"s_lshl_b32 {sT0}, {sT0}, 5",f"v_xor_b32 v53, {sT0}, v34"))
e(*p1_reads(0))
stv=sum([cap(stats,STV+4*m,STV+4*m+1,17+m) for m in range(3)],[]); stv=[stv[i+20*m] for i in range(20) for m in range(3)]
for s in range(16):
    b=WF+28*(s&1)
    vm=q.wait(s)
    mm=[[mfma(V(ACC+24*m+4*t,4),V(b+4*t,4),A(XM+64*m+4*s,4),V(ACC+24*m+4*t,4) if s else "0") for m in range(2)] for t in range(6)]
    mm.append([mfma(V(ACC+48,4),V(b+24,4),A(XH+4*s,4),V(ACC+48,4) if s else "0")])
    ld=p1x(s+LA1)
    if 4<=s<14: ld=merge(stv[:6],ld); stv=stv[6:]
    pstep(mm,p1_reads(s+1) if s<15 else [],ld,s==0,vm,s in(0,8))
assert not stv
stamp()
e(f"s_cmp_lg_u32 {sL}, 0","s_cbranch_scc1 Lpkb",f"v_lshlrev_b32 v18, 8, v{vR4}",f"v_lshl_add_u32 v18, v{vC8}, 2, v18",f"v_add_u32 v18, {FL_OFF}, v18")
e("s_barrier") if OPT.get("l0p",0) else poll(18,4)
e(*wo[:NWO]); e("s_branch Lpkd","Lpkb:","s_barrier","Lpkd:")
cs_fin(6,CS1,"Lcf1")
PK=120; XB=79872
n0=len(L)
def scale_tile(acc,cs,st,dst):
    e(pkfma(acc,cs,st),pkfma(acc+2,cs+2,st),pkmul(acc,acc,st,1),pkmul(acc+2,acc+2,st,1),f"v_cvt_pk_bf16_f32 v{dst}, v{acc}, v{acc+1}",f"v_cvt_pk_bf16_f32 v{dst+1}, v{acc+2}, v{acc+3}")
scale_tile(ACC+48,CV+24,STV+8,PK+24); e(f"ds_write_b64 v38, {V(PK+24,2)}")
for m in (1,0):
    for t in (2,3,4,5):
        scale_tile(ACC+24*m+4*t,CV+4*t,STV+4*m,PK+12*m+2*t)
        if t>=4: e(f"ds_write_b64 v62, {V(PK+12*m+2*t,2)} offset:{9216+((m+1)*2+t-4)*512}")
        elif m==1: e(f"ds_write_b64 v61, {V(PK+12*m+2*t,2)} offset:{(4+t-2)*512}")
e("s_waitcnt lgkmcnt(0)","s_barrier")
KP=148; VF=152
for h in range(2):
    e(f"ds_read_b64 {V(KP+2*h,2)}, v61 offset:{h*512}")
    for k in range(3): e(tr(V(VF+8*h+2*k,2),63,9216+(k*2+h)*512))
for m in range(2):
    for t in range(2): scale_tile(ACC+24*m+4*t,CV+4*t,STV+4*m,PK+12*m+2*t)
U=[(m,h) for m in range(2) for h in range(2)]
S=lambda u:168+16*u
def mf16(d,a,b,c): return f"v_mfma_f32_16x16x16_bf16 {d}, {a}, {b}, {c}"
for u,(m,h) in enumerate(U): e(mf16(V(S(u)+4,4),V(PK+12*m+4+2*h,2),V(PK+12*m+2*h,2),V(40,4)))
e("s_waitcnt lgkmcnt(0)")
for u,(m,h) in list(enumerate(U))[::-1]: e(mf16(V(S(u),4),V(KP+2*h,2) if m==0 else V(PK+4+2*h,2),V(PK+12*m+2*h,2),V(48 if m==0 else 44,4)))
def steps(f):
    for u in (3,2,1,0): e(*f(S(u),u))
steps(lambda s,u:[f"v_max3_f32 v{s+8}, v{s+4}, v{s+5}, v{s+6}",f"v_max3_f32 v{s+9}, v{s+7}, v{s}, v{s+1}"])
steps(lambda s,u:[f"v_max3_f32 v{s+8}, v{s+8}, v{s+2}, v{s+3}"])
steps(lambda s,u:[f"v_max_f32 v{s+8}, v{s+8}, v{s+9}"])
for sw in (16,32):
    steps(lambda s,u:[f"v_mov_b32 v{s+9}, v{s+8}"])
    steps(lambda s,u:[f"v_permlane{sw}_swap_b32 v{s+8}, v{s+9}"])
    steps(lambda s,u:[f"v_max_f32 v{s+8}, v{s+8}, v{s+9}"])
e(f"v_mov_b32 v20, 0x3eb8aa3b")
steps(lambda s,u:[f"v_mul_f32 v{s+8}, v20, v{s+8}"])
steps(lambda s,u:[f"v_pk_fma_f32 {V(s+2*i,2)}, {V(s+2*i,2)}, v[20:21], {V(s+8,2)} op_sel_hi:[1,0,0] neg_lo:[0,0,1] neg_hi:[0,0,1]" for i in range(4)]+[f"v_exp_f32 v{s+i}, v{s+i}" for i in range(8)])
steps(lambda s,u:[f"v_cvt_pk_bf16_f32 v{s+12+i}, v{s+2*i}, v{s+2*i+1}" for i in range(4)])
steps(lambda s,u:[mfma(V(s,4),V(VF+8*U[u][1]+2*U[u][0],4),V(s+12,4),"0"),mfma(V(s+4,4),V(vONES,4),V(s+12,4),"0")])
steps(lambda s,u:[f"v_rcp_f32 v{s+4}, v{s+4}"])
steps(lambda s,u:[pkmul(s+2*i,s+2*i,s+4,0) for i in range(2)])
steps(lambda s,u:[f"v_cvt_pk_bf16_f32 v{96+4*U[u][0]+2*U[u][1]+i}, v{s+2*i}, v{s+2*i+1}" for i in range(2)])
body=L[n0:]; del L[n0:]; e(*spread(body,wo[NWO:],0.0,0.5))
e(f"s_lshl_b32 {sT1}, {sJ}, 10",f"s_add_u32 {sT0}, {sRT1}, {sT1}",f"s_add_u32 {sT0}, {sT0}, {sL2}",f"s_add_u32 {sT1}, {sT0}, 0x4000")
e(f"buffer_store_dwordx4 {V(100,4)}, v{vL16}, {SWS}, {sT1} offen sc1",f"buffer_store_dwordx4 {V(96,4)}, v{vL16}, {SWS}, {sT0} offen sc1")
stamp()
w1=dma_w1(0)+dma_w1(1); e(*w1[:8]); signal(8); e(*w1[8:]); e(*dma_w1(2))
e(f"s_mov_b32 {sT2}, 98304"); rd128(sT2,32)
e(f"s_add_u32 {sT0}, {sRT2}, {sL2}",f"v_add_u32 v24, {sT0}, v{vL16}")
def wr2(s,t,c=4,o=0): return A(64+16*s+4*t+o,c) if s<8 else V(112+16*(s-8)+4*t+o,c)
e("s_waitcnt vmcnt(13)" if 0 else "")
for s in range(16): e(*[tr(wr2(s,t,2,2*ee),32+t,s*4096+ee*2048) for t in range(4) for ee in range(2)])
poll(vFL)
stamp()
for s in range(16): e(xl(A(4*s,4),24,s))
for s in range(16):
    e(f"s_waitcnt vmcnt({15-s})"+("" if s else " lgkmcnt(0)"))
    e(*[mfma(V(64+4*t,4),wr2(s,t),A(4*s,4),V(64+4*t,4) if s else "0") for t in range(4)])
stamp()
xepi(64,X1_OFF,S1_OFF,0)
e(*dma_w1(3)); signal(7)
e(*dma_w2((0,1,2)))
rd128('s51',40)
for t in range(4): e(f'v_add_u32 v{44+t}, 0x10000, v{40+t}',f'v_add_u32 v{48+t}, 0x20000, v{40+t}')
e(f"v_mul_u32_u24 v32, 224, v{vR4}",f"v_add_u32 v32, v32, v{vC8}",f"v_add_u32 v33, 57344, v32")
e(f"s_add_u32 {sT1}, {sRT1}, {sL2}",f"s_add_u32 {sT1}, {sT1}, {X1_OFF}",f"v_add_u32 v24, {sT1}, v{vL16}","v_add_u32 v25, 0x4000, v24",
  f"s_lshr_b32 {sT1}, {sRT1}, 4",f"s_add_u32 {sT1}, {sT1}, {sL2}",f"s_add_u32 {sT1}, {sT1}, {S1_OFF}",f"v_add_u32 v27, {sT1}, v60")
def p3_reads(s):
    b=WF+28*(s&1)
    return [tr(V(b+4*t+2*ee,2),32+(s>>3),(s&7)*7168+ee*3584+32*t) for t in range(7) for ee in range(2)]
e(f"s_cmp_eq_u32 {sL}, 0","s_cbranch_scc1 Lna3")
for i in range(28): e(f"v_accvgpr_read_b32 v{CV+i}, a{CS3+i}")
e("Lna3:")
poll(vFL)
stamp()
LA3=OPT.get("la3",4); q=Q(); AC=64
p3x=lambda s:[q.add(s,xl(A(64*m+4*s,4),24+m,s)) for m in range(2)] if s<16 else []
e(*p3x(0)); e(*[q.add("st",x) for x in stl(STV,27,0)+stl(STV+4,27,1024)])
for s in range(1,LA3): e(*p3x(s))
stv=sum([cap(stats,STV+4*m,STV+4*m+1,17+m)+[f"v_mul_f32 v{STV+4*m+2}, 0xbfb8aa3b, v{STV+4*m+1}"] for m in range(2)],[]); stv=[stv[i+21*m] for i in range(21) for m in range(2)]
PRE=128
def rd4a(b,off): return [tr(A(b+4*t+2*ee,2),40+(4+t if off<131072 else 8+t),(off&65535)+ee*2048) for t in range(4) for ee in range(2)]
cs_part(lambda s,ee:s*7168+ee*3584,CS3,"Lcp3",lambda:e(f"s_lshl_b32 {sT0}, {sW}, 5",f"v_add_u32 v52, {sT0}, v32",f"s_min_u32 {sT0}, {sT0}, 64",f"s_add_u32 {sT0}, {sT0}, 128",f"v_add_u32 v53, {sT0}, v32","v_add_u32 v54, 0x10000, v52","v_add_u32 v55, 0x10000, v53"))
for k in range(3): e(*rd4a(PRE+16*k,SLOT[k]*16384))
e(*p3_reads(0))
w2m={11:dma_w2((3,)),12:dma_w2((11,)),13:dma_w2((12,))}
for s in range(16):
    b=WF+28*(s&1)
    vm=q.wait(s)
    mm=[[mfma(V(AC+28*m+4*t,4),V(b+4*t,4),A(64*m+4*s,4),V(AC+28*m+4*t,4) if s else "0") for m in range(2)] for t in range(7)]
    ld=p3x(s+LA3)
    if s in w2m: ld+=[q.add("w",x) for x in w2m[s]]
    if 4<=s<11: ld=merge(stv[:6],ld); stv=stv[6:]
    pstep(mm,p3_reads(s+1) if s<15 else [],ld,s==0,vm,s in(0,8))
stamp()
assert not stv
e("s_waitcnt vmcnt(8)"); e(*rd4a(PRE+48,SLOT[3]*16384))
e("s_barrier")
cs_fin(7,CS3,"Lcf3")
n0=len(L)
e(f"s_lshr_b32 {sT0}, {sRT1}, 14",f"s_mul_i32 {sT0}, {sT0}, 57344",f"s_mul_i32 {sT1}, {sJ}, 3584",f"s_add_u32 {sT0}, {sT0}, {sT1}",f"s_add_u32 {sT0}, {sT0}, {sL2}",f"s_add_u32 {sT0}, {sT0}, {H_OFF}",f"v_lshlrev_b32 v34, 3, v{vLANE}")
for m in range(2):
    st=STV+4*m
    for t0 in (0,2,4,6):
        n=8 if t0<6 else 4; a=AC+28*m+4*t0; c=CV+4*t0; tm=160; pk=120+16*m+2*t0
        for i in range(0,n,2): e(pkfma(a+i,c+i,st))
        for i in range(0,n,2): e(pkmul(tm+i,a+i,st+2,0))
        for i in range(0,n,2): e(f"v_exp_f32 v{tm+i}, v{tm+i}",f"v_exp_f32 v{tm+i+1}, v{tm+i+1}",pkmul(a+i,a+i,st,1))
        for i in range(0,n,2): e(f"v_pk_add_f32 {V(tm+i,2)}, {V(tm+i,2)}, 1.0 op_sel_hi:[1,0]")
        for i in range(n): e(f"v_rcp_f32 v{tm+i}, v{tm+i}")
        for i in range(0,n,2): e(f"v_pk_mul_f32 {V(a+i,2)}, {V(a+i,2)}, {V(tm+i,2)}")
        for i in range(n//2): e(f"v_cvt_pk_bf16_f32 v{pk+i}, v{a+2*i}, v{a+2*i+1}")
        if t0<6: e(f"buffer_store_dwordx4 {V(pk,4)}, v{vL16}, {SWS}, {sT0} offen offset:{t0*512} sc1")
        else: e(f"buffer_store_dwordx2 {V(pk,2)}, v34, {SWS}, {sT0} offen offset:3072 sc1")
    if m==0: e(f"s_add_u32 {sT0}, {sT0}, 57344")
w2=dma_w2(range(4,11))+["s_waitcnt lgkmcnt(0)\n"+dma_w2((13,))[0]]+dma_w2((13,))[1:]; N2=OPT.get("n2",8); N3=OPT.get("n3",8)
body=L[n0:]; del L[n0:]; e(*spread(body,w2[:N2],0.0,0.8))
stamp()
e(*w2[N2:N2+N3]); signal(N3)
e(*w2[N2+N3:])
def rd4v(b,off): return [tr(V(b+4*t+2*ee,2),40+(t if off<65536 else 4+t if off<131072 else 8+t),(off&65535)+ee*2048) for t in range(4) for ee in range(2)]
e(f"s_lshr_b32 {sT0}, {sRT2}, 14",f"s_sub_u32 {sT0}, {sT0}, {sW}",f"s_mul_i32 {sT0}, {sT0}, 57344",f"s_mul_i32 {sT1}, {sW}, 14336",f"s_add_u32 {sT0}, {sT0}, {sT1}",f"s_add_u32 {sT0}, {sT0}, {sL2}",f"s_add_u32 {sT0}, {sT0}, {H_OFF}",
  f"v_add_u32 v36, {sT0}, v{vL16}",f"v_lshl_add_u32 v37, v{vLANE}, 3, {sT0}")
poll(vFL)
stamp()
def af(s,i,c=4,o=0):
    return A(((s%8)*4+i)*4+o,c)
q=Q(); LA4=OPT.get("la4",4)
def p4x(s):
    o=[]
    for i in range(4 if s<14 else 0):
        if s<12:
            jj,u=divmod(s,3); o.append(q.add(s,f"s_add_u32 {sT4}, s{[56,99,100,101][i]}, {jj*3584}\nbuffer_load_dwordx4 {af(s,i)}, v36, {SWS}, {sT4} offen offset:{u*1024} sc1"))
        else:
            for ee in range(2):
                jj=(s-12)*2+ee; o.append(q.add(s,f"s_add_u32 {sT4}, s{[56,99,100,101][i]}, {jj*3584}\nbuffer_load_dwordx2 {af(s,i,2,2*ee)}, v37, {SWS}, {sT4} offen offset:3072 sc1"))
    return o
for s in range(LA4): e(*p4x(s))
WB=lambda s: 232 if s&1 else 216
WR=lambda s,t: A(PRE+16*s+4*t,4) if s<4 else V(WB(s)+4*t,4)
for s in range(14):
    vm=q.wait(s)
    mm=[[mfma(V(64+16*i+4*t,4),WR(s,t),af(s,i),V(64+16*i+4*t,4) if s else "0") for i in range(4)] for t in range(4)]
    ld=p4x(s+LA4)
    pstep(mm,rd4v(WB(s+1),SLOT[s+1]*16384) if 3<=s<13 else [],ld,s<4,vm,s in(0,7))
stamp()
for i in range(1,4): e(f"s_add_u32 {sT0}, {sW}, {i}",f"s_and_b32 {sT0}, {sT0}, 3",f"s_mul_i32 {sT0}, {sT0}, 12288",f"s_add_u32 {sT0}, {sT0}, {98304+(i-1)*4096}",f"v_add_u32 v{16+i}, {sT0}, v{vL16}")
e(f"s_mul_i32 {sT0}, {sW}, 12288",f"s_add_u32 {sT0}, {sT0}, 98304",f"v_add_u32 v20, {sT0}, v{vL16}","s_barrier")
n0=len(L)
for i in range(1,4):
    for t in range(4): e(f"ds_write_b128 v{16+i}, {V(64+16*i+4*t,4)} offset:{t*1024}")
e("s_waitcnt lgkmcnt(0)","s_barrier")
for k in range(12): e(f"ds_read_b128 {V(128+4*k,4)}, v20 offset:{k*1024}")
e("s_waitcnt lgkmcnt(8)")
for i in range(8): e(f"v_pk_add_f32 {V(64+2*i,2)}, {V(64+2*i,2)}, {V(128+2*i,2)}")
e("s_waitcnt lgkmcnt(0)")
for i in range(8): e(f"v_pk_add_f32 {V(144+2*i,2)}, {V(144+2*i,2)}, {V(160+2*i,2)}")
for i in range(8): e(f"v_pk_add_f32 {V(128+2*i,2)}, {V(64+2*i,2)}, {V(144+2*i,2)}")
red=L[n0:]; del L[n0:]
e(f"s_cmp_lg_u32 {sL}, 0","s_cbranch_scc1 Lout")
wq=sum([dma_wq2(k) for k in range(6)],[]); N1=OPT.get("n1",4)
e(*spread(red,wq[:N1],0.0,0.4))
xepi(128,XA_OFF,SA_OFF,16*MB)
stamp()
e(*wq[N1:N1+10]); signal(10); e(*wq[N1+10:])
e(f"s_mov_b32 {sL}, 1",f"s_mov_b32 {sLB}, {16*MB}","s_branch Llayer")
e("Lout:")
e(*red)
xepi(128,0,0,0,False)
for u in range(2):
    for i in range(2): e(f"v_permlane16_swap_b32 v{vRES+4*u+i}, v{vRES+4*u+2+i}")
for u in range(2): e(f"buffer_store_dwordx4 {V(vRES+4*u,4)}, v59, {SOUT}, s52 offen offset:{u*64}"+(" sc1" if OPT.get("osc") else ""))
e("Lfin:","s_waitcnt vmcnt(0)")
if OPT["stamp"]:
    stamp()
    e(f"s_cmp_lg_u32 {sW}, 0","s_cbranch_scc1 Lend",f"s_lshl_b32 {sT0}, {sB}, 7",f"s_add_u32 {sT0}, {sT0}, {ST_OFF}","s_mov_b64 exec, 1","v_mov_b32 v18, 0")
    for i in range(30): e(f"v_mov_b32 v17, s{64+i}",f"buffer_store_dword v17, v18, {SWS}, {sT0} offen offset:{4*i}")
if OPT.get("dbgst"):
    e(f"s_cmp_lg_u32 {sB}, {OPT['dbgst']}","s_cbranch_scc1 Lend")
    for i in list(range(1,13))+[16,28]: e(f"s_sub_u32 s94, s{64+i}, s64","v_mov_b32 v17, s94",f"buffer_store_dword v17, v18, {SDBG}, 0 offen offset:{4*(min(i,13)+(i==28))+4}")
e("Lend:","s_endpgm")
K=NAME+"_kernel"
hdr=f"""; @launch grid=(256,1,1) block=(256,1,1) lds=163840
.amdgcn_target "amdgcn-amd-amdhsa--gfx950"
.text
.globl {K}
.p2align 8
.type {K},@function
{K}:
"""
ftr=f"""
.section .rodata,"a"
.p2align 6
.amdhsa_kernel {K}
  .amdhsa_next_free_vgpr 512
  .amdhsa_next_free_sgpr 102
  .amdhsa_accum_offset 256
  .amdhsa_group_segment_fixed_size 0
  .amdhsa_kernarg_size 72
  .amdhsa_user_sgpr_count 2
  .amdhsa_user_sgpr_kernarg_segment_ptr 1
  .amdhsa_system_sgpr_workgroup_id_x 1
.end_amdhsa_kernel
"""
open(sys.argv[1],"w").write(hdr+"\n".join(fix(L))+ftr)
print("stamps",nst[0],"lines",len(L))
```

```python
import sys
from asmlib import fix
NAME="interleave_layers__sliding_local_dilated__dense_activation_silu__prompt"
OPT=dict(stamp=0, stop=99, nodot=0)
for a in sys.argv[2:]:
    k,v=a.split("="); OPT[k]=int(v)
L=[]
def e(*x):
    for t in x:
        for u in t.split("\n"):
            u=u.strip()
            if u: L.append(u)
def V(n,c=1): return f"v{n}" if c==1 else f"v[{n}:{n+c-1}]"
def A(n,c=1): return f"a{n}" if c==1 else f"a[{n}:{n+c-1}]"
def merge(main,*fill):
    out=[]; n=len(main); pos=[0]*len(fill)
    for i,m in enumerate(main):
        out.append(m)
        for k,f in enumerate(fill):
            tgt=(len(f)*(i+1)+n-1)//n
            while pos[k]<min(tgt,len(f)): out.append(f[pos[k]]); pos[k]+=1
    return out
MB=1<<20
O_OFF,X1_OFF,H_OFF,XA_OFF,SA_OFF,S1_OFF,FL_OFF,ST_OFF=0,2*MB,4*MB,12*MB,14*MB,14*MB+262144,40*MB,41*MB
SX,SWQ,SWO,SW1,SW2,SWS,SOUT,SDBG="s[4:7]","s[8:11]","s[12:15]","s[16:19]","s[20:23]","s[24:27]","s[28:31]","s[32:35]"
sG,sJ,sW,sL="s36","s37","s38","s39"
sKS=40
sES,sT0,sT1,sT2,sLB,sPH,sHB,sCB="s56","s57","s58","s59","s60","s61","s62","s63"
sB="s96"; sONE="s97"; sTO="s98"
vLANE,vL16,vRES,vX1,vWQ,vFL,vFL2=0,1,2,10,11,12,13
vR4,vG,vC8=14,15,16
vONES=28
nst=[0]; skip=0
def stamp(x=False):
    global skip
    skip+=1
    if OPT.get('st4') and skip in (2,7,8,9,14): return
    if OPT["stamp"]:
        i=nst[0]; nst[0]+=1
        if i>=15: return
        e("s_memtime s[94:95]" if OPT.get("clk") else "s_memrealtime s[94:95]","s_waitcnt lgkmcnt(0)",f"s_cmp_eq_u32 {sL}, 0",f"s_cselect_b32 s{64+i}, s94, s{64+i}",f"s_cselect_b32 s{79+i}, s{79+i}, s94")
def signal(n=0,rb=(),st=True):
    lab=f"Lsig{len(L)}"
    e(f"s_add_u32 {sPH}, {sPH}, 1",f"s_or_b32 {sT0}, s44, {sPH}",f"v_mov_b32 v22, {sT0}","v_mov_b32 v23, s45",f"s_lshl_b32 {sT1}, {sJ}, 3",f"s_cmp_lg_u32 {sW}, 0",f"s_waitcnt vmcnt({n})")
    if OPT.get("st3") and st: stamp(); e(f"s_cmp_lg_u32 {sW}, 0")
    e("s_barrier",f"s_cbranch_scc1 {lab}","s_mov_b64 exec, 1",f"buffer_store_dwordx2 v[22:23], v{vFL}, {SWS}, {sT1} offen sc1","s_mov_b64 exec, -1",f"{lab}:")
def poll(vaddr,n=1):
    lab=f"Lpoll{len(L)}"
    e(f"s_cmp_lg_u32 {sW}, 0",f"s_cbranch_scc1 {lab}x",f"s_mov_b32 {sTO}, 0x40000",f"s_or_b32 {sT0}, s44, {sPH}",f"s_sub_u32 {sT1}, 16, {sPH}",f"{lab}:")
    if n==4: e(f"buffer_load_dwordx4 v[248:251], v{vaddr}, {SWS}, 0 offen sc1",f"buffer_load_dwordx4 v[252:255], v{vaddr}, {SWS}, 0 offen offset:16 sc1")
    else: e(f"buffer_load_dwordx2 v[248:249], v{vaddr}, {SWS}, 0 offen sc1")
    e(f"s_sub_u32 {sTO}, {sTO}, 1","s_cbranch_scc1 Lend","s_waitcnt vmcnt(0)")
    for k in range(n):
        e(f"v_subrev_u32 v{248+2*k}, {sT0}, v{248+2*k}",f"v_xor_b32 v{249+2*k}, s45, v{249+2*k}")
        if k: e(f"v_max_u32 v248, v248, v{248+2*k}",f"v_or_b32 v249, v249, v{249+2*k}")
    e(f"v_cmp_gt_u32 vcc, {sT1}, v248","v_cmp_eq_u32 s[2:3], 0, v249","s_and_b64 vcc, vcc, s[2:3]","s_cmp_eq_u64 vcc, exec",f"s_cbranch_scc1 {lab}x",f"s_sleep {OPT.get('slp',6)}" if OPT.get('slp',6) else "",f"s_branch {lab}",f"{lab}x:","s_waitcnt vmcnt(0) lgkmcnt(0)","s_barrier")
def dma(vo,srd,so): e(f"buffer_load_dwordx4 v{vo}, {srd}, {so} offen lds")
def xsum(r,t,op="v_add_f32"):
    e(f"v_mov_b32 v{t}, v{r}",f"v_permlane16_swap_b32 v{r}, v{t}",f"{op} v{r}, v{r}, v{t}",f"v_mov_b32 v{t}, v{r}",f"v_permlane32_swap_b32 v{r}, v{t}",f"{op} v{r}, v{r}, v{t}")
def stats(su,sq,t):
    e(f"v_add_f32 v{su}, v{su}, v{su+2}",f"v_add_f32 v{sq}, v{sq}, v{sq+2}")
    xsum(su,t); xsum(sq,t)
    e(f"v_mul_f32 v{su}, 0x3b000000, v{su}",f"v_mul_f32 v{sq}, 0x3b000000, v{sq}",f"v_fma_f32 v{sq}, -v{su}, v{su}, v{sq}",f"v_max_f32 v{sq}, 0, v{sq}",
      f"v_add_f32 v{sq}, 0x3727c5ac, v{sq}",f"v_rsq_f32 v{sq}, v{sq}")
def mfma(d,a,b,c): return f"v_mfma_f32_16x16x32_bf16 {d}, {a}, {b}, {c}"
def tr(d,ad,off): return f"ds_read_b64_tr_b16 {d}, v{ad} offset:{off}"

sL2="0" if OPT.get("reuse",0) else sLB
sT3,sT4="s40","s41"
sRT2,sRT1="s42","s43"
vWA=10
def D(m0,so,vo,srd): return f"{m0}\n{so}\nbuffer_load_dwordx4 v{vo}, {srd}, {sT3} offen lds"
def dma_wq():
    return [D(f"s_add_u32 m0, s54, {p*32768+s*2048+ee*1024}",f"s_add_u32 {sT3}, s53, {(32*s+16*ee)*3072+p*1024}",vWQ,SWQ) for s in range(4) for ee in range(2) for p in range(3)]
PQ,PO,P1W,P2W=44*MB,46*MB,47*MB,50*MB
def PD(ldsb,lds,srcb,src,n):
    o=[]
    for i in range(n):
        pre=f"s_add_u32 m0, {ldsb}, {lds+i*1024}\ns_add_u32 {sT3}, {srcb}, {src+i*1024}\n" if i%4==0 else ""
        o.append(pre+f"buffer_load_dwordx4 v{vL16}, {SWS}, {sT3} offen offset:{(i%4)*1024} sc1 lds")
    return o
def dma_wo(): return PD("s47",98304,"s46",0,16)
def dma_w1(k): return PD("s49",k*28672,"s48",k*28672,7)
SLOT={0:7,1:8,2:9,3:7,11:8,12:9,13:7,**{4+k:k for k in range(7)}}
def dma_w2(steps): return [x for st in steps for x in PD("s51",SLOT[st]*16384,"s50",st*4096,4)]
def dma_wq2(k): return PD("s51",k*16384,"s55",k*16384,4)
def rd128(base,v0):
    e(f"v_lshrrev_b32 v17, 1, v{vR4}",f"v_and_b32 v17, 3, v17",f"v_lshl_add_u32 v18, v{vR4}, 7, v{vC8}",f"v_add_u32 v18, {base}, v18")
    for t in range(4): e(f"v_xor_b32 v{v0+t}, {t}, v17",f"v_lshl_add_u32 v{v0+t}, v{v0+t}, 5, v18")
def cap(f,*a):
    n=len(L); f(*a); r=L[n:]; del L[n:]; return r
def spread(main,fill,lo=0.0,hi=1.0):
    m2=[]
    for x in main:
        if m2 and m2[-1].split("\n")[-1].startswith("s_cmp"): m2[-1]+="\n"+x
        else: m2.append(x)
    main=m2
    n=len(main); a=int(n*lo); b=max(a+1,int(n*hi)); return main[:a]+merge(main[a:b],fill)+main[b:]
def pkfma(a,c,mean): return f"v_pk_fma_f32 {V(a,2)}, {V(mean,2)}, {V(c,2)}, {V(a,2)} op_sel_hi:[0,1,1] neg_lo:[1,0,0] neg_hi:[1,0,0]"
def pkmul(d,a,pair,hi): return f"v_pk_mul_f32 {V(d,2)}, {V(a,2)}, {V(pair,2)} "+("op_sel:[0,1] op_sel_hi:[1,1]" if hi else "op_sel_hi:[1,0]")
def xepi(acc,xoff,soff,nxt,st=True):
    for k in range(8):
        r=vRES+k
        e(f"v_lshlrev_b32 v{96+2*k}, 16, v{r}",f"v_and_b32 v{97+2*k}, 0xffff0000, v{r}")
        if acc is not None: e(f"v_pk_add_f32 {V(96+2*k,2)}, {V(96+2*k,2)}, {V(acc+2*k,2)}",f"v_cvt_pk_bf16_f32 v{r}, v{96+2*k}, v{97+2*k}")
    if not st: return
    e(f"s_lshl_b32 {sT1}, {sCB}, 11",f"s_add_u32 {sT1}, {sT1}, {sRT2}",f"s_add_u32 {sT1}, {sT1}, {sL2}",f"s_add_u32 s53, {sT1}, {xoff+nxt}")
    for u in range(2): e(f"buffer_store_dwordx4 {V(vRES+4*u,4)}, v{vL16}, {SWS}, s53 offen offset:{u*1024} sc1")
    e(f"v_pk_mul_f32 v[20:21], v[96:97], v[96:97]")
    for k in range(1,8): e(f"v_pk_fma_f32 v[20:21], {V(96+2*k,2)}, {V(96+2*k,2)}, v[20:21]",f"v_pk_add_f32 v[96:97], v[96:97], {V(96+2*k,2)}")
    e("v_add_f32 v21, v20, v21","v_add_f32 v20, v96, v97")
    xsum(20,17); xsum(21,18)
    e(f"s_lshr_b32 {sT1}, {sRT2}, 4",f"s_lshl_b32 {sT0}, {sCB}, 7",f"s_add_u32 {sT1}, {sT1}, {sT0}",f"s_add_u32 {sT1}, {sT1}, {sL2}",f"s_add_u32 s54, {sT1}, {soff+nxt}",f"v_lshlrev_b32 v17, 3, v{vLANE}",
      "s_mov_b64 exec, 0xffff",f"buffer_store_dwordx2 v[20:21], v17, {SWS}, s54 offen sc1","s_mov_b64 exec, -1")
XRB=[f"buffer_load_dwordx4 v[248:251], v{vL16}, {SWS}, s53 offen offset:{u*1024} sc1" for u in range(2)]+[f"v_and_b32 v17, 0x70, v{vL16}",f"buffer_load_dwordx4 v[248:251], v17, {SWS}, s54 offen sc1"]
def cs_part(off,cs,lab,pre,R=2):
    e(f"s_cmp_lg_u32 {sL}, 0",f"s_cbranch_scc1 {lab}"); pre()
    rd=lambda s:[tr(V(WF+8*(s%6)+4*t+2*ee,2),52+t+2*(off(s,ee)>>16),off(s,ee)&65535) for t in range(2) for ee in range(2)]
    if R==1: rd=lambda s:[f"ds_read_b128 {V(WF+8*(s%6)+4*t,4)}, v{52+t+2*(off(s,0)>>16)} offset:{off(s,0)&65535}" for t in range(2)]
    for s in range(3): e(*rd(s))
    for s in range(16):
        e(f"s_waitcnt lgkmcnt({2*R*min(2,15-s)})")
        e(*[mfma(A(cs+4*t,4),V(WF+8*(s%6)+4*t,4),V(vONES,4),A(cs+4*t,4) if s else "0") for t in range(2)])
        if s+3<16: e(*rd(s+3))
    e(f"{lab}:")
def cs_fin(nt,cs,lab):
    e(f"s_cmp_lg_u32 {sL}, 0",f"s_cbranch_scc1 {lab}")
    e(f"v_lshlrev_b32 v17, 4, v{vG}",f"s_lshl_b32 {sT0}, {sW}, 6",f"v_add_u32 v19, {sT0}, v17","s_mov_b32 exec_lo, 0x10001","s_mov_b32 exec_hi, 0x10001")
    e(f"ds_write_b128 v19, {A(cs,4)}",f"ds_write_b128 v19, {A(cs+4,4)} offset:256","s_mov_b64 exec, -1","s_waitcnt lgkmcnt(0)","s_barrier")
    for R in (V,A):
        for t in range(7): e(f"ds_read_b128 {R((CV if R is V else cs)+4*t,4)}, v{19 if t>=nt else 17} offset:{128 if t>=nt else t*64}")
    e("s_waitcnt lgkmcnt(0)")
    if nt==7: e("s_barrier")
    e(f"{lab}:")
def pstep(groups,nxt,ld,first,vm,later,R=2):
    nt=len(groups); out=[]; k=0
    for t,g in enumerate(groups):
        if first: w=f"s_waitcnt vmcnt({vm}) lgkmcnt(0)" if t==0 else None
        else:
            n=R*(nt-1-t)+(R*t if nxt else 0)
            if OPT.get("hw",1): n=max(0,n-R) if t+1<nt else n
            w=(f"s_waitcnt vmcnt({vm}) lgkmcnt({n})" if t==0 else f"s_waitcnt lgkmcnt({n})" if not(OPT.get("hw",1) and t&1) else None)
        if w: out.append(w)
        if t==0 and later and OPT.get("st4"): out+=cap(stamp,True); out.append("s_nop 0")
        r=nxt[R*t:R*t+R] if nxt else []
        tgt=(len(ld)*(t+1)+nt-1)//nt; l=ld[k:tgt]; k=max(k,tgt)
        out+=merge(g,r,l)
    e(*out)
e(f"s_cmp_ge_u32 s2, 256","s_cbranch_scc1 Lend",f"s_mov_b32 {sB}, s2")
e("s_load_dwordx2 s[4:5], s[0:1], 0","s_load_dwordx2 s[8:9], s[0:1], 8","s_load_dwordx2 s[12:13], s[0:1], 16","s_load_dwordx2 s[16:17], s[0:1], 32","s_load_dwordx2 s[20:21], s[0:1], 40",
  "s_load_dwordx2 s[24:25], s[0:1], 64","s_load_dwordx2 s[28:29], s[0:1], 48","s_load_dwordx2 s[32:33], s[0:1], 56")
for b,n in ((4,2*MB),(8,512*3072),(12,512*1024),(16,512*3584),(20,1792*1024),(24,64*MB),(28,2*MB),(32,256)):
    e(f"s_mov_b32 s{b+2}, {n}",f"s_mov_b32 s{b+3}, 0x20000")
e(f"v_lshrrev_b32 v17, 6, v0",f"v_and_b32 v{vLANE}, 63, v0",f"v_readfirstlane_b32 {sW}, v17",
  f"s_and_b32 {sT0}, s2, 7",f"s_lshr_b32 {sT1}, s2, 3",f"s_and_b32 {sJ}, {sT1}, 15",f"s_lshr_b32 {sT1}, {sT1}, 4",f"s_lshl_b32 {sG}, {sT0}, 1",f"s_add_u32 {sG}, {sG}, {sT1}",
  f"s_lshr_b32 {sHB}, {sJ}, 3",f"s_and_b32 {sCB}, {sJ}, 7",
  f"s_lshl_b32 {sT0}, {sG}, 3",f"s_lshl_b32 {sT1}, {sHB}, 2",f"s_add_u32 {sT1}, {sT1}, {sT0}",f"s_add_u32 {sT1}, {sT1}, {sW}",f"s_lshl_b32 {sRT2}, {sT1}, 14",f"s_lshl_b32 {sT1}, {sW}, 1",f"s_add_u32 {sT1}, {sT1}, {sT0}",f"s_lshl_b32 {sRT1}, {sT1}, 14")
e(f"v_lshrrev_b32 v{vG}, 4, v{vLANE}",f"v_and_b32 v17, 15, v{vLANE}",f"v_lshlrev_b32 v59, 10, v17",f"v_and_b32 v18, 1, v{vG}",f"v_lshl_add_u32 v59, v18, 5, v59",f"v_lshrrev_b32 v18, 1, v{vG}",f"v_lshl_add_u32 v59, v18, 4, v59",
  f"s_lshl_b32 {sT1}, {sCB}, 7",f"s_add_u32 s52, {sRT2}, {sT1}","s_waitcnt lgkmcnt(0)")
for u in range(2): e(f"buffer_load_dwordx4 {V(vRES+4*u,4)}, v59, {SX}, s52 offen offset:{u*64}")
e(f"s_or_b32 {sT0}, s2, {sW}",f"s_cmp_lg_u32 {sT0}, 0","s_cbranch_scc1 Lnn","s_memrealtime s[44:45]","v_mov_b32 v19, 0","s_waitcnt lgkmcnt(0)","s_lshl_b64 s[44:45], s[44:45], 4","s_or_b32 s45, s45, 0x40000000","v_mov_b32 v20, s44","v_mov_b32 v21, s45",
  "s_mov_b64 exec, 1",f"buffer_store_dwordx2 v[20:21], v19, {SDBG}, 0 offen sc1","s_mov_b64 exec, -1","Lnn:")
e(f"v_lshrrev_b32 v{vR4}, 2, v{vLANE}",f"v_mul_u32_u24 v{vWQ}, 3072, v{vR4}",f"v_and_b32 v17, 1, v{vG}",f"v_lshlrev_b32 v17, 1, v17",f"v_xor_b32 v17, v17, v{vLANE}",f"v_and_b32 v17, 3, v17",f"v_lshl_add_u32 v{vWQ}, v17, 4, v{vWQ}",
  f"s_lshl_b32 {sT0}, {sJ}, 6",f"v_add_u32 v{vWQ}, {sT0}, v{vWQ}")
e(f"s_mov_b32 {sL}, 0")
e("s_mov_b64 s[44:45], 0")
if OPT["stamp"]:
    for i in range(30): e(f"s_mov_b32 s{64+i}, 0")
stamp()
wq=dma_wq(); NE=OPT.get("ne",0)
if OPT.get("l0p",0): wq=[]; NE=0
e(f"s_mul_i32 s53, {sW}, {4*32*3072}",f"s_lshl_b32 s54, {sW}, 13"); NF=min(NE,OPT.get("nf",0)); e(*wq[:NF])
if OPT.get("pf",0):
    e(f"s_lshr_b32 {sT0}, {sB}, 3",f"s_lshl_b32 {sT0}, {sT0}, 2",f"s_add_u32 {sT0}, {sT0}, {sW}",f"s_mul_i32 {sT0}, {sT0}, 12288",f"v_lshlrev_b32 v17, 4, v{vLANE}")
    for k in range(12):
        e(f"buffer_load_dwordx4 {V(112+4*k,4)}, v17, {SWQ}, {sT0} offen offset:{(k&3)*1024}")
        if k&3==3: e(f"s_addk_i32 {sT0}, 0x1000")
e(f"s_mov_b32 {sLB}, 0",f"s_mov_b32 {sPH}, 0",f"s_lshl_b32 s47, {sW}, 14",f"s_lshl_b32 s46, {sCB}, 16","s_add_u32 s46, s46, s47",f"s_add_u32 s46, s46, {PO}",f"s_mul_i32 s49, {sW}, 7168",f"s_mul_i32 s48, {sJ}, 114688","s_add_u32 s48, s48, s49",f"s_add_u32 s48, s48, {P1W}",
  f"s_lshl_b32 s50, {sCB}, 2",f"s_add_u32 s50, s50, {sW}","s_mul_i32 s50, s50, 57344",f"s_add_u32 s50, s50, {P2W}",f"s_lshl_b32 s51, {sW}, 12",f"s_mul_i32 s55, {sJ}, 98304","s_add_u32 s55, s55, s51",f"s_add_u32 s55, s55, {PQ}")
for i in range(4): e(f"s_add_u32 {sT0}, {sW}, {i}",f"s_and_b32 {sT0}, {sT0}, 3",f"s_mul_i32 s{[56,99,100,101][i]}, {sT0}, 57344")
def packpath(lab,loads,stores):
    e(f"{lab}:")
    for i,(pre,vo,srd) in enumerate(loads): e(pre,f"buffer_load_dwordx4 {V(64+4*i,4)}, v{vo}, {srd}, {sT3} offen")
    for i,pre in enumerate(stores): e(pre.replace(f"u32 {sT3},",f"u32 s{[2,3,4,5,6,7,98][i]},"))
    e(f"s_mov_b32 s97, {len(stores)}","s_branch Lpk")
for w in (1,2,3): e(f"s_cmp_eq_u32 {sW}, {w}",f"s_cbranch_scc1 Lpk{w}")
e(f"s_mul_i32 {sT0}, {sG}, {32*3072}",f"s_lshl_b32 {sT1}, {sG}, 11",f"s_add_u32 {sT1}, {sT1}, s55")
packpath("Lpk0a",[(f"s_add_u32 {sT3}, {sT0}, {16*ee*3072+p*1024}",vWQ,SWQ) for p in range(3) for ee in range(2)],[f"s_add_u32 {sT3}, {sT1}, {p*32768+ee*1024}" for p in range(3) for ee in range(2)])
e("Lpk1:")
e(f"s_mul_i32 {sT0}, {sJ}, 224")
for q in range(7):
    e(f"v_add_u32 v17, {64*q}, v{vLANE}",f"v_mul_u32_u24 v18, 4682, v17",f"v_lshrrev_b32 v18, 16, v18",f"v_mul_u32_u24 v{52+q}, {3584-224}, v18",f"v_lshl_add_u32 v{52+q}, v17, 4, v{52+q}",f"v_add_u32 v{52+q}, {sT0}, v{52+q}")
e(f"s_mul_i32 {sT3}, {sG}, 114688",f"s_mul_i32 {sT1}, {sG}, 7168",f"s_add_u32 {sT1}, {sT1}, s48",f"s_sub_u32 {sT1}, {sT1}, s49")
for k in range(7): e(f"s_mov_b32 m0, {131072+k*1024}","s_nop 0",f"buffer_load_dwordx4 v{52+k}, {SW1}, {sT3} offen lds")
packpath("Lpk1a",[],[f"s_add_u32 {sT3}, {sT1}, {k*1024}" for k in range(7)])
e("Lpk2:")
e(f"v_lshrrev_b32 v{vWA}, 3, v{vLANE}",f"v_lshlrev_b32 v{vWA}, 10, v{vWA}",f"v_lshlrev_b32 v17, 1, v{vG}",f"v_xor_b32 v17, v17, v{vLANE}",f"v_and_b32 v17, 7, v17",f"v_lshl_add_u32 v{vWA}, v17, 4, v{vWA}",f"s_lshl_b32 {sT0}, {sCB}, 7",f"v_add_u32 v{vWA}, {sT0}, v{vWA}")
e(f"s_lshl_b32 {sT0}, {sG}, 1",f"s_add_u32 {sT0}, {sT0}, {sHB}",f"s_mul_i32 {sT0}, {sT0}, {56*1024}",f"s_lshr_b32 {sT1}, {sG}, 2",f"s_sub_u32 {sT1}, {sT1}, 2",f"s_mul_i32 {sT1}, {sT1}, 57344",f"s_add_u32 {sT1}, {sT1}, s50",
  f"s_and_b32 {sT4}, {sG}, 3",f"s_lshl_b32 {sT2}, {sT4}, 11",f"s_add_u32 {sT2}, {sT2}, {49152-5120}",f"s_add_u32 {sT2}, {sT2}, {sT1}",f"s_mul_i32 {sT4}, {sT4}, 12288",f"s_add_u32 {sT1}, {sT1}, {sT4}",f"s_mul_i32 {sT4}, {sHB}, 7168",f"s_add_u32 {sT1}, {sT1}, {sT4}",
  f"s_cmp_eq_u32 {sHB}, 0",f"s_cselect_b32 {sT2}, {sT1}, {sT2}")
packpath("Lpk2a",[(f"s_add_u32 {sT3}, {sT0}, {k*8192}",vWA,SW2) for k in range(7)],[f"s_add_u32 {sT3}, {sT1 if k<5 else sT2}, {k*1024}" for k in range(7)])
e("Lpk3:")
e(f"v_lshrrev_b32 v{vWA}, 3, v{vLANE}",f"v_lshlrev_b32 v{vWA}, 10, v{vWA}",f"v_lshlrev_b32 v17, 1, v{vG}",f"v_xor_b32 v17, v17, v{vLANE}",f"v_and_b32 v17, 7, v17",f"v_lshl_add_u32 v{vWA}, v17, 4, v{vWA}",f"s_lshl_b32 {sT0}, {sCB}, 7",f"v_add_u32 v{vWA}, {sT0}, v{vWA}")
e(f"s_lshl_b32 {sT0}, {sG}, 1",f"s_add_u32 {sT0}, {sT0}, {sHB}",f"s_lshl_b32 {sT1}, {sT0}, 11",f"s_lshl_b32 {sT0}, {sT0}, 14",f"s_add_u32 {sT1}, {sT1}, s46",f"s_sub_u32 {sT1}, {sT1}, s47")
packpath("Lpk3a",[(f"s_add_u32 {sT3}, {sT0}, {k*8192}",vWA,SWO) for k in range(2)],[f"s_add_u32 {sT3}, {sT1}, {k*1024}" for k in range(2)])
e("Lpk:")
if OPT.get("st5"): stamp()
e(*wq[NF:NE])
if OPT.get("st5"): stamp()
e(f"v_lshlrev_b32 v{vL16}, 4, v{vLANE}",f"v_and_b32 v{vC8}, 3, v{vLANE}",f"v_lshlrev_b32 v{vC8}, 3, v{vC8}")
for i in range(4): e(f"v_mov_b32 v{vONES+i}, 0x3f803f80")
e(f"s_lshl_b32 {sT0}, {sG}, 8",f"s_add_u32 {sT0}, {sT0}, {FL_OFF}",f"v_and_b32 v17, 15, v{vLANE}",f"v_lshl_add_u32 v{vFL}, v17, 3, {sT0}",
  f"s_cmp_eq_u32 {sG}, 0",f"s_cselect_b32 {sT1}, 0, 256",f"v_and_b32 v17, 1, v{vG}",f"v_mul_u32_u24 v17, {sT1}, v17",f"v_sub_u32 v{vFL2}, v{vFL}, v17")
e(f"v_and_b32 v17, 15, v{vLANE}",f"v_lshlrev_b32 v60, 3, v17",f"v_lshl_add_u32 v60, v{vG}, 8, v60")
if OPT.get("st5"): stamp()
e(f"s_cmp_lg_u32 {sW}, 0","s_cbranch_scc1 Lng","v_mov_b32 v19, 0",f"s_mov_b32 {sT2}, 0x40000","Lnp:",f"buffer_load_dwordx2 v[20:21], v19, {SDBG}, 0 offen sc1",f"s_sub_u32 {sT2}, {sT2}, 1","s_cbranch_scc1 Lend","s_waitcnt vmcnt(0)",
  "v_readfirstlane_b32 s44, v20","v_readfirstlane_b32 s45, v21","s_cmp_eq_u32 s45, 0","s_cbranch_scc1 Lnp","Lng:")
e(f"s_waitcnt vmcnt({NE-NF})")
if OPT.get("st5"): stamp()
for u in range(2):
    for i in range(2): e(f"v_permlane16_swap_b32 v{vRES+4*u+i}, v{vRES+4*u+2+i}")
e(f"s_cmp_lg_u32 {sW}, 1","s_cbranch_scc1 Lntr",f"v_mul_u32_u24 v17, 224, v{vR4}",f"v_add_u32 v17, v17, v{vC8}","v_add_u32 v17, 0x20000, v17")
e(*[tr(V(64+4*t+2*ee,2),17,ee*3584+32*t) for t in range(7) for ee in range(2)]); e("Lntr:")
xepi(None,XA_OFF,SA_OFF,0)
e("s_waitcnt lgkmcnt(0)")
for i in range(7):
    if i in (2,6): e(f"s_cmp_le_u32 s97, {i}","s_cbranch_scc1 Lpks")
    e(f"buffer_store_dwordx4 {V(64+4*i,4)}, v{vL16}, {SWS}, s{[2,3,4,5,6,7,98][i]} offen sc1")
e("Lpks:")
if OPT.get("st5"): stamp()
if OPT.get("st5"): stamp()
if OPT.get("st5"): stamp()
ND=OPT.get("nd",10) if wq else 0
e(f"s_mul_i32 s53, {sW}, {4*32*3072}",f"s_lshl_b32 s54, {sW}, 13"); e(*wq[NE:NE+ND]); signal(ND,(),False); e(*wq[NE+ND:])
if OPT.get("st5"): stamp()
e("Llayer:")
XM,XH=0,128; ACC=64; WF=136; CS1,CS3=200,228; CV=200; STV=228
e(f"v_and_b32 v17, 1, v{vG}",f"v_lshl_add_u32 v18, v{vR4}, 6, v{vC8}",f"v_lshl_add_u32 v32, v17, 5, v18",f"v_xor_b32 v33, 32, v32",f"v_add_u32 v34, 0x10000, v32",f"v_add_u32 v35, 0x10000, v33",
  f"s_lshr_b32 {sT0}, {sW}, 1",f"s_add_u32 {sT0}, {sT0}, 1",f"s_lshl_b32 {sT0}, {sT0}, 15",f"s_and_b32 {sT1}, {sW}, 1",f"s_lshl_b32 {sT1}, {sT1}, 5",f"v_xor_b32 v36, {sT1}, v32",f"v_add_u32 v36, {sT0}, v36")
e(f"v_and_b32 v17, 15, v{vLANE}",f"v_lshlrev_b32 v18, 2, v{vG}","v_sub_u32 v17, v17, v18",f"s_mov_b32 {sT0}, 0xf149f2ca",f"v_mov_b32 v19, {sT0}",f"s_or_b32 {sT1}, {sG}, {sW}",f"s_cmp_eq_u32 {sT1}, 0",f"s_cselect_b32 {sT1}, {sT0}, 0")
for i in range(4):
    e(f"v_subrev_u32 v18, {i}, v17","v_and_b32 v37, 0x80000001, v18","v_cmp_eq_u32 vcc, 0, v37",f"v_cndmask_b32_e64 v{40+i}, v19, 0, vcc",
      "v_cmp_eq_u32 vcc, 0x80000000, v37",f"v_cndmask_b32_e64 v{44+i}, v19, 0, vcc",f"v_add_f32 v{48+i}, {sT1}, v{44+i}")
e(f"s_add_u32 {sT1}, {sRT1}, {sLB}",f"s_add_u32 {sT1}, {sT1}, {XA_OFF}",f"v_add_u32 v24, {sT1}, v{vL16}","v_add_u32 v25, 0x4000, v24",
  f"s_lshr_b32 {sT1}, {sRT1}, 4",f"s_add_u32 {sT1}, {sT1}, {sLB}",f"s_add_u32 {sT1}, {sT1}, {SA_OFF}",f"v_add_u32 v27, {sT1}, v60",
  f"s_lshl_b32 {sT0}, {sG}, 17",f"s_add_u32 {sT1}, {sLB}, {XA_OFF-16384}",f"s_add_u32 {sT1}, {sT1}, {sT0}",f"s_lshr_b32 {sT0}, {sT0}, 4",f"s_add_u32 {sT0}, {sT0}, {sLB}",f"s_add_u32 {sT0}, {sT0}, {SA_OFF-1024}",
  f"s_cmp_eq_u32 {sG}, 0",f"s_cselect_b32 {sT1}, 0xffff0000, {sT1}",f"s_cselect_b32 {sT0}, 0xffff0000, {sT0}",f"v_add_u32 v26, {sT1}, v{vL16}",f"v_add_u32 v37, {sT0}, v60")
def p1_reads(s):
    b=WF+28*(s&1)
    return [tr(V(b+4*t+2*ee,2),ad,po+s*2048+ee*1024) for t,(ad,po) in enumerate(((32,0),(33,0),(32,32768),(33,32768),(34,0),(35,0),(36,0))) for ee in range(2)]
XB=79872
e(f"s_lshl_b32 {sT0}, {sW}, 11",f"s_add_u32 {sT0}, {sT0}, {XB}",f"v_lshl_add_u32 v61, v{vLANE}, 3, {sT0}",f"v_and_b32 v17, 15, v{vLANE}",f"v_lshlrev_b32 v17, 5, v17",f"v_lshl_add_u32 v17, v{vG}, 3, v17",f"v_add_u32 v62, {sT0}, v17",
  f"v_lshl_add_u32 v63, v{vR4}, 5, v{vC8}",f"v_add_u32 v63, {sT0}, v63",
  f"v_add_u32 v17, 9216, v17",f"v_lshlrev_b32 v38, 3, v{vLANE}",f"s_cmp_ge_u32 {sW}, 2","s_cselect_b64 vcc, -1, 0",f"s_and_b32 {sT0}, {sW}, 1",f"s_lshl_b32 {sT0}, {sT0}, 9","v_cndmask_b32 v38, v38, v17, vcc",f"s_add_u32 {sT0}, {sT0}, {XB}",f"v_add_u32 v38, {sT0}, v38")
stamp()
e(f"s_cmp_eq_u32 {sL}, 0","s_cbranch_scc1 Lna1")
for i in range(28): e(f"v_accvgpr_read_b32 v{CV+i}, a{CS1+i}")
if OPT.get("l0p",0):
    poll(vFL2); e("s_branch Lna2","Lna1:",f"v_lshlrev_b32 v18, 8, v{vR4}",f"v_lshl_add_u32 v18, v{vC8}, 2, v18",f"v_add_u32 v18, {FL_OFF}, v18")
    poll(18,4); e(*sum([dma_wq2(k) for k in range(6)],[])); e("Lna2:")
else: e("Lna1:"); poll(vFL2)
stamp()
class Q:
    def __init__(s): s.q=[]
    def add(s,tag,ins): s.q.append(tag); return ins
    def wait(s,tag): return len(s.q)-1-max(i for i,t in enumerate(s.q) if t==tag)
def xl(dst,ad,s): return (f"s_movk_i32 {sT4}, {(s>>2)*4096}\n" if s>=4 else "")+f"buffer_load_dwordx4 {dst}, v{ad}, {SWS}, {sT4 if s>=4 else 0} offen offset:{(s&3)*1024} sc1"
def stl(dst,ad,o): return [f"buffer_load_dwordx2 {V(dst+2*k,2)}, v{ad}, {SWS}, 0 offen offset:{o+128*k} sc1" for k in range(2)]
LA1=OPT.get("la1",3); q=Q()
HL=OPT.get("hl",0)
p1x=lambda s:[q.add(s,xl(A(r,4),ad,s)) for r,ad in ((XM+4*s,24),(XM+64+4*s,25),(XH+4*s,26))[:3-HL]] if s<16 else []
if HL:
    assert OPT.get("nwo",0)==0
    e("s_add_u32 m0, s51, 98304",f"v_add_u32 v39, 98304, v{vL16}")
    for k in range(4): e(f"buffer_load_dwordx4 v26, {SWS}, s51 offen offset:{k*1024} sc1 lds")
e(*p1x(0)); e(*[q.add("st",x) for x in stl(STV,27,0)+stl(STV+4,27,1024)+stl(STV+8,37,0)])
for s in range(1,LA1): e(*p1x(s))
NWO=OPT.get("nwo",0); wo=dma_wo()
e(f"s_cmp_eq_u32 {sL}, 0","s_cbranch_scc1 Lnwo"); e(*wo[:NWO]); e("Lnwo:")
if HL: e(f"s_waitcnt vmcnt({len(q.q)})","s_barrier"); e(*[f"ds_read_b128 {A(XH+4*k,4)}, v39 offset:{k*1024}" for k in range(16)])
cs_part(lambda s,ee:s*2048+ee*1024,CS1,"Lcp1",lambda:e(f"s_waitcnt vmcnt({len(q.q)})\ns_barrier" if OPT.get("l0p",0) else "","v_add_u32 v52, 0xffff8000, v36",f"s_and_b32 {sT0}, {sW}, 1",f"s_lshl_b32 {sT0}, {sT0}, 5",f"v_xor_b32 v53, {sT0}, v34"))
e(*p1_reads(0))
stv=sum([cap(stats,STV+4*m,STV+4*m+1,17+m) for m in range(3)],[]); stv=[stv[i+20*m] for i in range(20) for m in range(3)]
for s in range(16):
    b=WF+28*(s&1)
    vm=q.wait(s)
    mm=[[mfma(V(ACC+24*m+4*t,4),V(b+4*t,4),A(XM+64*m+4*s,4),V(ACC+24*m+4*t,4) if s else "0") for m in range(2)] for t in range(6)]
    mm.append([mfma(V(ACC+48,4),V(b+24,4),A(XH+4*s,4),V(ACC+48,4) if s else "0")])
    ld=p1x(s+LA1)
    if 4<=s<14: ld=merge(stv[:6],ld); stv=stv[6:]
    pstep(mm,p1_reads(s+1) if s<15 else [],ld,s==0,vm,s in(0,8))
assert not stv
stamp()
e(f"s_cmp_lg_u32 {sL}, 0","s_cbranch_scc1 Lpkb",f"v_lshlrev_b32 v18, 8, v{vR4}",f"v_lshl_add_u32 v18, v{vC8}, 2, v18",f"v_add_u32 v18, {FL_OFF}, v18")
e("s_barrier") if OPT.get("l0p",0) else poll(18,4)
e(*wo[:NWO]); e("s_branch Lpkd","Lpkb:","s_barrier","Lpkd:")
cs_fin(6,CS1,"Lcf1")
PK=120; XB=79872
n0=len(L)
def scale_tile(acc,cs,st,dst):
    e(pkfma(acc,cs,st),pkfma(acc+2,cs+2,st),pkmul(acc,acc,st,1),pkmul(acc+2,acc+2,st,1),f"v_cvt_pk_bf16_f32 v{dst}, v{acc}, v{acc+1}",f"v_cvt_pk_bf16_f32 v{dst+1}, v{acc+2}, v{acc+3}")
scale_tile(ACC+48,CV+24,STV+8,PK+24); e(f"ds_write_b64 v38, {V(PK+24,2)}")
for m in (1,0):
    for t in (2,3,4,5):
        scale_tile(ACC+24*m+4*t,CV+4*t,STV+4*m,PK+12*m+2*t)
        if t>=4: e(f"ds_write_b64 v62, {V(PK+12*m+2*t,2)} offset:{9216+((m+1)*2+t-4)*512}")
        elif m==1: e(f"ds_write_b64 v61, {V(PK+12*m+2*t,2)} offset:{(4+t-2)*512}")
e("s_waitcnt lgkmcnt(0)","s_barrier")
KP=148; VF=152
for h in range(2):
    e(f"ds_read_b64 {V(KP+2*h,2)}, v61 offset:{h*512}")
    for k in range(3): e(tr(V(VF+8*h+2*k,2),63,9216+(k*2+h)*512))
for m in range(2):
    for t in range(2): scale_tile(ACC+24*m+4*t,CV+4*t,STV+4*m,PK+12*m+2*t)
U=[(m,h) for m in range(2) for h in range(2)]
S=lambda u:168+16*u
def mf16(d,a,b,c): return f"v_mfma_f32_16x16x16_bf16 {d}, {a}, {b}, {c}"
for u,(m,h) in enumerate(U): e(mf16(V(S(u)+4,4),V(PK+12*m+4+2*h,2),V(PK+12*m+2*h,2),V(40,4)))
e("s_waitcnt lgkmcnt(0)")
for u,(m,h) in list(enumerate(U))[::-1]: e(mf16(V(S(u),4),V(KP+2*h,2) if m==0 else V(PK+4+2*h,2),V(PK+12*m+2*h,2),V(48 if m==0 else 44,4)))
def steps(f):
    for u in (3,2,1,0): e(*f(S(u),u))
steps(lambda s,u:[f"v_max3_f32 v{s+8}, v{s+4}, v{s+5}, v{s+6}",f"v_max3_f32 v{s+9}, v{s+7}, v{s}, v{s+1}"])
steps(lambda s,u:[f"v_max3_f32 v{s+8}, v{s+8}, v{s+2}, v{s+3}"])
steps(lambda s,u:[f"v_max_f32 v{s+8}, v{s+8}, v{s+9}"])
for sw in (16,32):
    steps(lambda s,u:[f"v_mov_b32 v{s+9}, v{s+8}"])
    steps(lambda s,u:[f"v_permlane{sw}_swap_b32 v{s+8}, v{s+9}"])
    steps(lambda s,u:[f"v_max_f32 v{s+8}, v{s+8}, v{s+9}"])
e(f"v_mov_b32 v20, 0x3eb8aa3b")
steps(lambda s,u:[f"v_mul_f32 v{s+8}, v20, v{s+8}"])
steps(lambda s,u:[f"v_pk_fma_f32 {V(s+2*i,2)}, {V(s+2*i,2)}, v[20:21], {V(s+8,2)} op_sel_hi:[1,0,0] neg_lo:[0,0,1] neg_hi:[0,0,1]" for i in range(4)]+[f"v_exp_f32 v{s+i}, v{s+i}" for i in range(8)])
steps(lambda s,u:[f"v_cvt_pk_bf16_f32 v{s+12+i}, v{s+2*i}, v{s+2*i+1}" for i in range(4)])
steps(lambda s,u:[mfma(V(s,4),V(VF+8*U[u][1]+2*U[u][0],4),V(s+12,4),"0"),mfma(V(s+4,4),V(vONES,4),V(s+12,4),"0")])
steps(lambda s,u:[f"v_rcp_f32 v{s+4}, v{s+4}"])
steps(lambda s,u:[pkmul(s+2*i,s+2*i,s+4,0) for i in range(2)])
steps(lambda s,u:[f"v_cvt_pk_bf16_f32 v{96+4*U[u][0]+2*U[u][1]+i}, v{s+2*i}, v{s+2*i+1}" for i in range(2)])
body=L[n0:]; del L[n0:]; e(*spread(body,wo[NWO:],0.0,0.5))
e(f"s_lshl_b32 {sT1}, {sJ}, 10",f"s_add_u32 {sT0}, {sRT1}, {sT1}",f"s_add_u32 {sT0}, {sT0}, {sL2}",f"s_add_u32 {sT1}, {sT0}, 0x4000")
e(f"buffer_store_dwordx4 {V(100,4)}, v{vL16}, {SWS}, {sT1} offen sc1",f"buffer_store_dwordx4 {V(96,4)}, v{vL16}, {SWS}, {sT0} offen sc1")
stamp()
w1=dma_w1(0)+dma_w1(1); e(*w1[:8]); signal(8); e(*w1[8:]); e(*dma_w1(2))
e(f"s_mov_b32 {sT2}, 98304"); rd128(sT2,32)
e(f"s_add_u32 {sT0}, {sRT2}, {sL2}",f"v_add_u32 v24, {sT0}, v{vL16}")
def wr2(s,t,c=4,o=0): return A(64+16*s+4*t+o,c) if s<8 else V(112+16*(s-8)+4*t+o,c)
e("s_waitcnt vmcnt(13)" if 0 else "")
for s in range(16): e(*[tr(wr2(s,t,2,2*ee),32+t,s*4096+ee*2048) for t in range(4) for ee in range(2)])
poll(vFL)
stamp()
for s in range(16): e(xl(A(4*s,4),24,s))
for s in range(16):
    e(f"s_waitcnt vmcnt({15-s})"+("" if s else " lgkmcnt(0)"))
    e(*[mfma(V(64+4*t,4),wr2(s,t),A(4*s,4),V(64+4*t,4) if s else "0") for t in range(4)])
stamp()
xepi(64,X1_OFF,S1_OFF,0)
e(*dma_w1(3)); signal(7)
e(*dma_w2((0,1,2)))
rd128('s51',40)
for t in range(4): e(f'v_add_u32 v{44+t}, 0x10000, v{40+t}',f'v_add_u32 v{48+t}, 0x20000, v{40+t}')
e(f"v_mov_b32 v32, v{vL16}",f"v_add_u32 v33, 57344, v32")
e(f"s_add_u32 {sT1}, {sRT1}, {sL2}",f"s_add_u32 {sT1}, {sT1}, {X1_OFF}",f"v_add_u32 v24, {sT1}, v{vL16}","v_add_u32 v25, 0x4000, v24",
  f"s_lshr_b32 {sT1}, {sRT1}, 4",f"s_add_u32 {sT1}, {sT1}, {sL2}",f"s_add_u32 {sT1}, {sT1}, {S1_OFF}",f"v_add_u32 v27, {sT1}, v60")
def p3_reads(s):
    b=WF+28*(s&1)
    return [f"ds_read_b128 {V(b+4*t,4)}, v{32+(s>>3)} offset:{(s&7)*7168+1024*t}" for t in range(7)]
e(f"s_cmp_eq_u32 {sL}, 0","s_cbranch_scc1 Lna3")
for i in range(28): e(f"v_accvgpr_read_b32 v{CV+i}, a{CS3+i}")
e("Lna3:")
poll(vFL)
stamp()
LA3=OPT.get("la3",4); q=Q(); AC=64
p3x=lambda s:[q.add(s,xl(A(64*m+4*s,4),24+m,s)) for m in range(2)] if s<16 else []
e(*p3x(0)); e(*[q.add("st",x) for x in stl(STV,27,0)+stl(STV+4,27,1024)])
for s in range(1,LA3): e(*p3x(s))
stv=sum([cap(stats,STV+4*m,STV+4*m+1,17+m)+[f"v_mul_f32 v{STV+4*m+2}, 0xbfb8aa3b, v{STV+4*m+1}"] for m in range(2)],[]); stv=[stv[i+21*m] for i in range(21) for m in range(2)]
PRE=128
def rd4a(b,off): return [tr(A(b+4*t+2*ee,2),40+(4+t if off<131072 else 8+t),(off&65535)+ee*2048) for t in range(4) for ee in range(2)]
cs_part(lambda s,ee:s*7168+ee*3584,CS3,"Lcp3",lambda:e(f"s_lshl_b32 {sT0}, {sW}, 10",f"v_add_u32 v52, {sT0}, v32",f"s_min_u32 {sT0}, {sT0}, 2048",f"s_add_u32 {sT0}, {sT0}, 4096",f"v_add_u32 v53, {sT0}, v32","v_add_u32 v54, 0x10000, v52","v_add_u32 v55, 0x10000, v53"),1)
for k in range(3): e(*rd4a(PRE+16*k,SLOT[k]*16384))
e(*p3_reads(0))
w2m={11:dma_w2((3,)),12:dma_w2((11,)),13:dma_w2((12,))}
for s in range(16):
    b=WF+28*(s&1)
    vm=q.wait(s)
    mm=[[mfma(V(AC+28*m+4*t,4),V(b+4*t,4),A(64*m+4*s,4),V(AC+28*m+4*t,4) if s else "0") for m in range(2)] for t in range(7)]
    ld=p3x(s+LA3)
    if s in w2m: ld+=[q.add("w",x) for x in w2m[s]]
    if 4<=s<11: ld=merge(stv[:6],ld); stv=stv[6:]
    pstep(mm,p3_reads(s+1) if s<15 else [],ld,s==0,vm,s in(0,8),1)
stamp()
assert not stv
e("s_waitcnt vmcnt(8)"); e(*rd4a(PRE+48,SLOT[3]*16384))
e("s_barrier")
cs_fin(7,CS3,"Lcf3")
n0=len(L)
e(f"s_lshr_b32 {sT0}, {sRT1}, 14",f"s_mul_i32 {sT0}, {sT0}, 57344",f"s_mul_i32 {sT1}, {sJ}, 3584",f"s_add_u32 {sT0}, {sT0}, {sT1}",f"s_add_u32 {sT0}, {sT0}, {sL2}",f"s_add_u32 {sT0}, {sT0}, {H_OFF}",f"v_lshlrev_b32 v34, 3, v{vLANE}")
for m in range(2):
    st=STV+4*m
    for t0 in (0,2,4,6):
        n=8 if t0<6 else 4; a=AC+28*m+4*t0; c=CV+4*t0; tm=160; pk=120+16*m+2*t0
        for i in range(0,n,2): e(pkfma(a+i,c+i,st))
        for i in range(0,n,2): e(pkmul(tm+i,a+i,st+2,0))
        for i in range(0,n,2): e(f"v_exp_f32 v{tm+i}, v{tm+i}",f"v_exp_f32 v{tm+i+1}, v{tm+i+1}",pkmul(a+i,a+i,st,1))
        for i in range(0,n,2): e(f"v_pk_add_f32 {V(tm+i,2)}, {V(tm+i,2)}, 1.0 op_sel_hi:[1,0]")
        for i in range(n): e(f"v_rcp_f32 v{tm+i}, v{tm+i}")
        for i in range(0,n,2): e(f"v_pk_mul_f32 {V(a+i,2)}, {V(a+i,2)}, {V(tm+i,2)}")
        for i in range(n//2): e(f"v_cvt_pk_bf16_f32 v{pk+i}, v{a+2*i}, v{a+2*i+1}")
        if t0<6: e(f"buffer_store_dwordx4 {V(pk,4)}, v{vL16}, {SWS}, {sT0} offen offset:{t0*512} sc1")
        else: e(f"buffer_store_dwordx2 {V(pk,2)}, v34, {SWS}, {sT0} offen offset:3072 sc1")
    if m==0: e(f"s_add_u32 {sT0}, {sT0}, 57344")
w2=dma_w2(range(4,11))+["s_waitcnt lgkmcnt(0)\n"+dma_w2((13,))[0]]+dma_w2((13,))[1:]; N2=OPT.get("n2",8); N3=OPT.get("n3",8)
body=L[n0:]; del L[n0:]; e(*spread(body,w2[:N2],0.0,0.8))
stamp()
e(*w2[N2:N2+N3]); signal(N3)
e(*w2[N2+N3:])
def rd4v(b,off): return [tr(V(b+4*t+2*ee,2),40+(t if off<65536 else 4+t if off<131072 else 8+t),(off&65535)+ee*2048) for t in range(4) for ee in range(2)]
e(f"s_lshr_b32 {sT0}, {sRT2}, 14",f"s_sub_u32 {sT0}, {sT0}, {sW}",f"s_mul_i32 {sT0}, {sT0}, 57344",f"s_mul_i32 {sT1}, {sW}, 14336",f"s_add_u32 {sT0}, {sT0}, {sT1}",f"s_add_u32 {sT0}, {sT0}, {sL2}",f"s_add_u32 {sT0}, {sT0}, {H_OFF}",
  f"v_add_u32 v36, {sT0}, v{vL16}",f"v_lshl_add_u32 v37, v{vLANE}, 3, {sT0}")
poll(vFL)
stamp()
def af(s,i,c=4,o=0):
    return A(((s%8)*4+i)*4+o,c)
q=Q(); LA4=OPT.get("la4",4)
def p4x(s):
    o=[]
    for i in range(4 if s<14 else 0):
        if s<12:
            jj,u=divmod(s,3); o.append(q.add(s,f"s_add_u32 {sT4}, s{[56,99,100,101][i]}, {jj*3584}\nbuffer_load_dwordx4 {af(s,i)}, v36, {SWS}, {sT4} offen offset:{u*1024} sc1"))
        else:
            for ee in range(2):
                jj=(s-12)*2+ee; o.append(q.add(s,f"s_add_u32 {sT4}, s{[56,99,100,101][i]}, {jj*3584}\nbuffer_load_dwordx2 {af(s,i,2,2*ee)}, v37, {SWS}, {sT4} offen offset:3072 sc1"))
    return o
for s in range(LA4): e(*p4x(s))
WB=lambda s: 232 if s&1 else 216
WR=lambda s,t: A(PRE+16*s+4*t,4) if s<4 else V(WB(s)+4*t,4)
for s in range(14):
    vm=q.wait(s)
    mm=[[mfma(V(64+16*i+4*t,4),WR(s,t),af(s,i),V(64+16*i+4*t,4) if s else "0") for i in range(4)] for t in range(4)]
    ld=p4x(s+LA4)
    pstep(mm,rd4v(WB(s+1),SLOT[s+1]*16384) if 3<=s<13 else [],ld,s<4,vm,s in(0,7))
stamp()
for i in range(1,4): e(f"s_add_u32 {sT0}, {sW}, {i}",f"s_and_b32 {sT0}, {sT0}, 3",f"s_mul_i32 {sT0}, {sT0}, 12288",f"s_add_u32 {sT0}, {sT0}, {98304+(i-1)*4096}",f"v_add_u32 v{16+i}, {sT0}, v{vL16}")
e(f"s_mul_i32 {sT0}, {sW}, 12288",f"s_add_u32 {sT0}, {sT0}, 98304",f"v_add_u32 v20, {sT0}, v{vL16}","s_barrier")
n0=len(L)
for i in range(1,4):
    for t in range(4): e(f"ds_write_b128 v{16+i}, {V(64+16*i+4*t,4)} offset:{t*1024}")
e("s_waitcnt lgkmcnt(0)","s_barrier")
for k in range(12): e(f"ds_read_b128 {V(128+4*k,4)}, v20 offset:{k*1024}")
e("s_waitcnt lgkmcnt(8)")
for i in range(8): e(f"v_pk_add_f32 {V(64+2*i,2)}, {V(64+2*i,2)}, {V(128+2*i,2)}")
e("s_waitcnt lgkmcnt(0)")
for i in range(8): e(f"v_pk_add_f32 {V(144+2*i,2)}, {V(144+2*i,2)}, {V(160+2*i,2)}")
for i in range(8): e(f"v_pk_add_f32 {V(128+2*i,2)}, {V(64+2*i,2)}, {V(144+2*i,2)}")
red=L[n0:]; del L[n0:]
e(f"s_cmp_lg_u32 {sL}, 0","s_cbranch_scc1 Lout")
wq=sum([dma_wq2(k) for k in range(6)],[]); N1=OPT.get("n1",4)
e(*spread(red,wq[:N1],0.0,0.4))
xepi(128,XA_OFF,SA_OFF,16*MB)
stamp()
e(*wq[N1:N1+10]); signal(10); e(*wq[N1+10:])
e(f"s_mov_b32 {sL}, 1",f"s_mov_b32 {sLB}, {16*MB}","s_branch Llayer")
e("Lout:")
e(*red)
xepi(128,0,0,0,False)
for u in range(2):
    for i in range(2): e(f"v_permlane16_swap_b32 v{vRES+4*u+i}, v{vRES+4*u+2+i}")
for u in range(2): e(f"buffer_store_dwordx4 {V(vRES+4*u,4)}, v59, {SOUT}, s52 offen offset:{u*64}"+(" sc1" if OPT.get("osc") else ""))
e("Lfin:","s_waitcnt vmcnt(0)")
if OPT["stamp"]:
    stamp()
    e(f"s_cmp_lg_u32 {sW}, 0","s_cbranch_scc1 Lend",f"s_lshl_b32 {sT0}, {sB}, 7",f"s_add_u32 {sT0}, {sT0}, {ST_OFF}","s_mov_b64 exec, 1","v_mov_b32 v18, 0")
    for i in range(30): e(f"v_mov_b32 v17, s{64+i}",f"buffer_store_dword v17, v18, {SWS}, {sT0} offen offset:{4*i}")
if OPT.get("dbgst"):
    e(f"s_cmp_lg_u32 {sB}, {OPT['dbgst']}","s_cbranch_scc1 Lend")
    for i in list(range(1,13))+[16,28]: e(f"s_sub_u32 s94, s{64+i}, s64","v_mov_b32 v17, s94",f"buffer_store_dword v17, v18, {SDBG}, 0 offen offset:{4*(min(i,13)+(i==28))+4}")
e("Lend:","s_endpgm")
K=NAME+"_kernel"
hdr=f"""; @launch grid=(256,1,1) block=(256,1,1) lds=163840
.amdgcn_target "amdgcn-amd-amdhsa--gfx950"
.text
.globl {K}
.p2align 8
.type {K},@function
{K}:
"""
ftr=f"""
.section .rodata,"a"
.p2align 6
.amdhsa_kernel {K}
  .amdhsa_next_free_vgpr 512
  .amdhsa_next_free_sgpr 102
  .amdhsa_accum_offset 256
  .amdhsa_group_segment_fixed_size 0
  .amdhsa_kernarg_size 72
  .amdhsa_user_sgpr_count 2
  .amdhsa_user_sgpr_kernarg_segment_ptr 1
  .amdhsa_system_sgpr_workgroup_id_x 1
.end_amdhsa_kernel
"""
open(sys.argv[1],"w").write(hdr+"\n".join(fix(L))+ftr)
print("stamps",nst[0],"lines",len(L))
```

```python
import sys
from asmlib import fix
NAME="interleave_layers__sliding_local_dilated__dense_activation_silu__prompt"
OPT=dict(stamp=0, stop=99, nodot=0)
for a in sys.argv[2:]:
    k,v=a.split("="); OPT[k]=int(v)
L=[]
def e(*x):
    for t in x:
        for u in t.split("\n"):
            u=u.strip()
            if u: L.append(u)
def V(n,c=1): return f"v{n}" if c==1 else f"v[{n}:{n+c-1}]"
def A(n,c=1): return f"a{n}" if c==1 else f"a[{n}:{n+c-1}]"
def merge(main,*fill):
    out=[]; n=len(main); pos=[0]*len(fill)
    for i,m in enumerate(main):
        out.append(m)
        for k,f in enumerate(fill):
            tgt=(len(f)*(i+1)+n-1)//n
            while pos[k]<min(tgt,len(f)): out.append(f[pos[k]]); pos[k]+=1
    return out
MB=1<<20
O_OFF,X1_OFF,H_OFF,XA_OFF,SA_OFF,S1_OFF,FL_OFF,ST_OFF=0,2*MB,4*MB,12*MB,14*MB,14*MB+262144,40*MB,41*MB
SX,SWQ,SWO,SW1,SW2,SWS,SOUT,SDBG="s[4:7]","s[8:11]","s[12:15]","s[16:19]","s[20:23]","s[24:27]","s[28:31]","s[32:35]"
sG,sJ,sW,sL="s36","s37","s38","s39"
sKS=40
sES,sT0,sT1,sT2,sLB,sPH,sHB,sCB="s56","s57","s58","s59","s60","s61","s62","s63"
sB="s96"; sONE="s97"; sTO="s98"
vLANE,vL16,vRES,vX1,vWQ,vFL,vFL2=0,1,2,10,11,12,13
vR4,vG,vC8=14,15,16
vONES=28
nst=[0]; skip=0
def stamp(x=False):
    global skip
    skip+=1
    if OPT.get('st4') and skip in (2,7,8,9,14): return
    if OPT["stamp"]:
        i=nst[0]; nst[0]+=1
        if i>=15: return
        e("s_memtime s[94:95]" if OPT.get("clk") else "s_memrealtime s[94:95]","s_waitcnt lgkmcnt(0)",f"s_cmp_eq_u32 {sL}, 0",f"s_cselect_b32 s{64+i}, s94, s{64+i}",f"s_cselect_b32 s{79+i}, s{79+i}, s94")
def signal(n=0,rb=(),st=True):
    lab=f"Lsig{len(L)}"
    e(f"s_add_u32 {sPH}, {sPH}, 1",f"s_or_b32 {sT0}, s44, {sPH}",f"v_mov_b32 v22, {sT0}","v_mov_b32 v23, s45",f"s_lshl_b32 {sT1}, {sJ}, 3",f"s_cmp_lg_u32 {sW}, 0",f"s_waitcnt vmcnt({n})")
    if OPT.get("st3") and st: stamp(); e(f"s_cmp_lg_u32 {sW}, 0")
    e("s_barrier",f"s_cbranch_scc1 {lab}","s_mov_b64 exec, 1",f"buffer_store_dwordx2 v[22:23], v{vFL}, {SWS}, {sT1} offen sc1","s_mov_b64 exec, -1",f"{lab}:")
def poll(vaddr,n=1):
    lab=f"Lpoll{len(L)}"
    e(f"s_cmp_lg_u32 {sW}, 0",f"s_cbranch_scc1 {lab}x",f"s_mov_b32 {sTO}, 0x40000",f"s_or_b32 {sT0}, s44, {sPH}",f"s_sub_u32 {sT1}, 16, {sPH}",f"{lab}:")
    if n==4: e(f"buffer_load_dwordx4 v[248:251], v{vaddr}, {SWS}, 0 offen sc1",f"buffer_load_dwordx4 v[252:255], v{vaddr}, {SWS}, 0 offen offset:16 sc1")
    else: e(f"buffer_load_dwordx2 v[248:249], v{vaddr}, {SWS}, 0 offen sc1")
    e(f"s_sub_u32 {sTO}, {sTO}, 1","s_cbranch_scc1 Lend","s_waitcnt vmcnt(0)")
    for k in range(n):
        e(f"v_subrev_u32 v{248+2*k}, {sT0}, v{248+2*k}",f"v_xor_b32 v{249+2*k}, s45, v{249+2*k}")
        if k: e(f"v_max_u32 v248, v248, v{248+2*k}",f"v_or_b32 v249, v249, v{249+2*k}")
    e(f"v_cmp_gt_u32 vcc, {sT1}, v248","v_cmp_eq_u32 s[2:3], 0, v249","s_and_b64 vcc, vcc, s[2:3]","s_cmp_eq_u64 vcc, exec",f"s_cbranch_scc1 {lab}x",f"s_sleep {OPT.get('slp',6)}" if OPT.get('slp',6) else "",f"s_branch {lab}",f"{lab}x:","s_waitcnt vmcnt(0) lgkmcnt(0)","s_barrier")
def dma(vo,srd,so): e(f"buffer_load_dwordx4 v{vo}, {srd}, {so} offen lds")
def xsum(r,t,op="v_add_f32"):
    e(f"v_mov_b32 v{t}, v{r}",f"v_permlane16_swap_b32 v{r}, v{t}",f"{op} v{r}, v{r}, v{t}",f"v_mov_b32 v{t}, v{r}",f"v_permlane32_swap_b32 v{r}, v{t}",f"{op} v{r}, v{r}, v{t}")
def stats(su,sq,t):
    e(f"v_add_f32 v{su}, v{su}, v{su+2}",f"v_add_f32 v{sq}, v{sq}, v{sq+2}")
    xsum(su,t); xsum(sq,t)
    e(f"v_mul_f32 v{su}, 0x3b000000, v{su}",f"v_mul_f32 v{sq}, 0x3b000000, v{sq}",f"v_fma_f32 v{sq}, -v{su}, v{su}, v{sq}",f"v_max_f32 v{sq}, 0, v{sq}",
      f"v_add_f32 v{sq}, 0x3727c5ac, v{sq}",f"v_rsq_f32 v{sq}, v{sq}")
def mfma(d,a,b,c): return f"v_mfma_f32_16x16x32_bf16 {d}, {a}, {b}, {c}"
def tr(d,ad,off): return f"ds_read_b64_tr_b16 {d}, v{ad} offset:{off}"

ROT=OPT.get("rot",0 if OPT["stamp"] else 1); assert not(ROT and OPT["stamp"])
NT=lambda k:" nt" if OPT.get(k,0) else ""
sL2="0" if OPT.get("reuse",0) else sLB
sT3,sT4="s40","s41"
sRT2,sRT1="s42","s43"
vWA=10
def D(m0,so,vo,srd): return f"{m0}\n{so}\nbuffer_load_dwordx4 v{vo}, {srd}, {sT3} offen lds"
def dma_wq():
    return [D(f"s_add_u32 m0, s54, {p*32768+s*2048+ee*1024}",f"s_add_u32 {sT3}, s53, {(32*s+16*ee)*3072+p*1024}",vWQ,SWQ) for s in range(4) for ee in range(2) for p in range(3)]
PQ,PO,P1W,P2W=44*MB,46*MB,47*MB,50*MB
def PD(ldsb,lds,srcb,src,n):
    o=[]
    for i in range(n):
        pre=f"s_add_u32 m0, {ldsb}, {lds+i*1024}\ns_add_u32 {sT3}, {srcb}, {src+i*1024}\n" if i%4==0 else ""
        o.append(pre+f"buffer_load_dwordx4 v{vL16}, {SWS}, {sT3} offen offset:{(i%4)*1024} sc1 lds")
    return o
def dma_wo(): return PD("s47",98304,"s82" if ROT else "s46",0,16)
def dma_w1(k): return PD("s49",k*28672,f"s{68+k}",0,7) if ROT else PD("s49",k*28672,"s48",k*28672,7)
SLOT={0:7,1:8,2:9,3:7,11:8,12:9,13:7,**{4+k:k for k in range(7)}}
def dma_w2(steps): return [x for st in steps for x in (PD("s51",SLOT[st]*16384,f"s{72+st//3}",(st%3)*4096,4) if ROT and st<12 else PD("s51",SLOT[st]*16384,"s50",st*4096,4))]
def dma_wq2(k): return PD("s51",k*16384,f"s{80+(k&1)}",(k>>1)*32768,4) if ROT else PD("s51",k*16384,"s55",k*16384,4)
def rd128(base,v0):
    e(f"v_lshrrev_b32 v17, 1, v{vR4}",f"v_and_b32 v17, 3, v17",f"v_lshl_add_u32 v18, v{vR4}, 7, v{vC8}",f"v_add_u32 v18, {base}, v18")
    for t in range(4): e(f"v_xor_b32 v{v0+t}, {t}, v17",f"v_lshl_add_u32 v{v0+t}, v{v0+t}, 5, v18")
def cap(f,*a):
    n=len(L); f(*a); r=L[n:]; del L[n:]; return r
def spread(main,fill,lo=0.0,hi=1.0):
    m2=[]
    for x in main:
        if m2 and m2[-1].split("\n")[-1].startswith("s_cmp"): m2[-1]+="\n"+x
        else: m2.append(x)
    main=m2
    n=len(main); a=int(n*lo); b=max(a+1,int(n*hi)); return main[:a]+merge(main[a:b],fill)+main[b:]
def pkfma(a,c,mean): return f"v_pk_fma_f32 {V(a,2)}, {V(mean,2)}, {V(c,2)}, {V(a,2)} op_sel_hi:[0,1,1] neg_lo:[1,0,0] neg_hi:[1,0,0]"
def pkmul(d,a,pair,hi): return f"v_pk_mul_f32 {V(d,2)}, {V(a,2)}, {V(pair,2)} "+("op_sel:[0,1] op_sel_hi:[1,1]" if hi else "op_sel_hi:[1,0]")
def xepi(acc,xoff,soff,nxt,st=True):
    for k in range(8):
        r=vRES+k
        e(f"v_lshlrev_b32 v{96+2*k}, 16, v{r}",f"v_and_b32 v{97+2*k}, 0xffff0000, v{r}")
        if acc is not None: e(f"v_pk_add_f32 {V(96+2*k,2)}, {V(96+2*k,2)}, {V(acc+2*k,2)}",f"v_cvt_pk_bf16_f32 v{r}, v{96+2*k}, v{97+2*k}")
    if not st: return
    e(f"s_lshl_b32 {sT1}, {sCB}, 11",f"s_add_u32 {sT1}, {sT1}, {sRT2}",f"s_add_u32 {sT1}, {sT1}, {sL2}",f"s_add_u32 s53, {sT1}, {xoff+nxt}")
    for u in range(2): e(f"buffer_store_dwordx4 {V(vRES+4*u,4)}, v{vL16}, {SWS}, s53 offen offset:{u*1024} sc1")
    e(f"v_pk_mul_f32 v[20:21], v[96:97], v[96:97]")
    for k in range(1,8): e(f"v_pk_fma_f32 v[20:21], {V(96+2*k,2)}, {V(96+2*k,2)}, v[20:21]",f"v_pk_add_f32 v[96:97], v[96:97], {V(96+2*k,2)}")
    e("v_add_f32 v21, v20, v21","v_add_f32 v20, v96, v97")
    xsum(20,17); xsum(21,18)
    e(f"s_lshr_b32 {sT1}, {sRT2}, 4",f"s_lshl_b32 {sT0}, {sCB}, 7",f"s_add_u32 {sT1}, {sT1}, {sT0}",f"s_add_u32 {sT1}, {sT1}, {sL2}",f"s_add_u32 s54, {sT1}, {soff+nxt}",f"v_lshlrev_b32 v17, 3, v{vLANE}",
      "s_mov_b64 exec, 0xffff",f"buffer_store_dwordx2 v[20:21], v17, {SWS}, s54 offen sc1","s_mov_b64 exec, -1")
XRB=[f"buffer_load_dwordx4 v[248:251], v{vL16}, {SWS}, s53 offen offset:{u*1024} sc1" for u in range(2)]+[f"v_and_b32 v17, 0x70, v{vL16}",f"buffer_load_dwordx4 v[248:251], v17, {SWS}, s54 offen sc1"]
def cs_part(off,cs,lab,pre,R=2):
    e(f"s_cmp_lg_u32 {sL}, 0",f"s_cbranch_scc1 {lab}"); pre()
    rd=lambda s:[tr(V(WF+8*(s%6)+4*t+2*ee,2),52+t+2*(off(s,ee)>>16),off(s,ee)&65535) for t in range(2) for ee in range(2)]
    if R==1: rd=lambda s:[f"ds_read_b128 {V(WF+8*(s%6)+4*t,4)}, v{52+t+2*(off(s,0)>>16)} offset:{off(s,0)&65535}" for t in range(2)]
    for s in range(3): e(*rd(s))
    for s in range(16):
        e(f"s_waitcnt lgkmcnt({2*R*min(2,15-s)})")
        e(*[mfma(A(cs+4*t,4),V(WF+8*(s%6)+4*t,4),V(vONES,4),A(cs+4*t,4) if s else "0") for t in range(2)])
        if s+3<16: e(*rd(s+3))
    e(f"{lab}:")
def cs_fin(nt,cs,lab):
    e(f"s_cmp_lg_u32 {sL}, 0",f"s_cbranch_scc1 {lab}")
    e(f"v_lshlrev_b32 v17, 4, v{vG}",f"s_lshl_b32 {sT0}, {sW}, 6",f"v_add_u32 v19, {sT0}, v17","s_mov_b32 exec_lo, 0x10001","s_mov_b32 exec_hi, 0x10001")
    e(f"ds_write_b128 v19, {A(cs,4)}",f"ds_write_b128 v19, {A(cs+4,4)} offset:256","s_mov_b64 exec, -1","s_waitcnt lgkmcnt(0)","s_barrier")
    for R in (V,A):
        for t in range(7): e(f"ds_read_b128 {R((CV if R is V else cs)+4*t,4)}, v{19 if t>=nt else 17} offset:{128 if t>=nt else t*64}")
    e("s_waitcnt lgkmcnt(0)")
    if nt==7: e("s_barrier")
    e(f"{lab}:")
def pstep(groups,nxt,ld,first,vm,later,R=2):
    nt=len(groups); out=[]; k=0
    for t,g in enumerate(groups):
        if first: w=f"s_waitcnt vmcnt({vm}) lgkmcnt(0)" if t==0 else None
        else:
            n=R*(nt-1-t)+(R*t if nxt else 0)
            if OPT.get("hw",1): n=max(0,n-R) if t+1<nt else n
            w=(f"s_waitcnt vmcnt({vm}) lgkmcnt({n})" if t==0 else f"s_waitcnt lgkmcnt({n})" if not(OPT.get("hw",1) and t&1) else None)
        if w: out.append(w)
        if t==0 and later and OPT.get("st4"): out+=cap(stamp,True); out.append("s_nop 0")
        r=nxt[R*t:R*t+R] if nxt else []
        tgt=(len(ld)*(t+1)+nt-1)//nt; l=ld[k:tgt]; k=max(k,tgt)
        out+=merge(g,r,l)
    e(*out)
e(f"s_cmp_ge_u32 s2, 256","s_cbranch_scc1 Lend",f"s_mov_b32 {sB}, s2")
e("s_load_dwordx2 s[4:5], s[0:1], 0","s_load_dwordx2 s[8:9], s[0:1], 8","s_load_dwordx2 s[12:13], s[0:1], 16","s_load_dwordx2 s[16:17], s[0:1], 32","s_load_dwordx2 s[20:21], s[0:1], 40",
  "s_load_dwordx2 s[24:25], s[0:1], 64","s_load_dwordx2 s[28:29], s[0:1], 48","s_load_dwordx2 s[32:33], s[0:1], 56")
for b,n in ((4,2*MB),(8,512*3072),(12,512*1024),(16,512*3584),(20,1792*1024),(24,64*MB),(28,2*MB),(32,256)):
    e(f"s_mov_b32 s{b+2}, {n}",f"s_mov_b32 s{b+3}, 0x20000")
e(f"v_lshrrev_b32 v17, 6, v0",f"v_and_b32 v{vLANE}, 63, v0",f"v_readfirstlane_b32 {sW}, v17",
  *([f"s_and_b32 {sT0}, s2, 7",f"s_lshr_b32 {sT1}, s2, 3",f"s_and_b32 {sJ}, {sT1}, 15",f"s_lshr_b32 {sT1}, {sT1}, 4",f"s_lshl_b32 {sG}, {sT0}, 1",f"s_add_u32 {sG}, {sG}, {sT1}",
  f"s_lshr_b32 {sHB}, {sJ}, 3",f"s_and_b32 {sCB}, {sJ}, 7"] if OPT.get("x2",3)==0 else
  [f"s_and_b32 {sG}, s2, 6",f"s_lshl_b32 {sG}, {sG}, 1",f"s_lshr_b32 {sT1}, s2, 6",f"s_add_u32 {sG}, {sG}, {sT1}",f"s_bfe_u32 {sJ}, s2, 0x30003",f"s_and_b32 {sT0}, s2, 1",f"s_lshl_b32 {sT1}, {sT0}, 3",f"s_add_u32 {sJ}, {sJ}, {sT1}",
  ]+([f"s_bfe_u32 {sHB}, {sJ}, 0x10002",f"s_and_b32 {sCB}, {sJ}, 3",f"s_lshl_b32 {sT0}, {sT0}, 2",f"s_add_u32 {sCB}, {sCB}, {sT0}"] if OPT.get("x2",3)==1 else [f"s_lshr_b32 {sHB}, {sJ}, 3",f"s_and_b32 {sCB}, {sJ}, 7"]) if OPT.get("x2",3)&1 else
  [f"s_and_b32 {sG}, s2, 4",f"s_lshl_b32 {sG}, {sG}, 1",f"s_lshr_b32 {sT1}, s2, 5",f"s_add_u32 {sG}, {sG}, {sT1}",f"s_bfe_u32 {sJ}, s2, 0x20003",f"s_and_b32 {sT0}, s2, 3",f"s_lshl_b32 {sT1}, {sT0}, 2",f"s_add_u32 {sJ}, {sJ}, {sT1}",
  f"s_bfe_u32 {sHB}, {sJ}, 0x10001",f"s_and_b32 {sCB}, {sJ}, 1",f"s_lshl_b32 {sT0}, {sT0}, 1",f"s_add_u32 {sCB}, {sCB}, {sT0}"]),
  f"s_lshl_b32 {sT0}, {sG}, 3",f"s_lshl_b32 {sT1}, {sHB}, 2",f"s_add_u32 {sT1}, {sT1}, {sT0}",f"s_add_u32 {sT1}, {sT1}, {sW}",f"s_lshl_b32 {sRT2}, {sT1}, 14",f"s_lshl_b32 {sT1}, {sW}, 1",f"s_add_u32 {sT1}, {sT1}, {sT0}",f"s_lshl_b32 {sRT1}, {sT1}, 14")
e(f"v_lshrrev_b32 v{vG}, 4, v{vLANE}",f"v_and_b32 v17, 15, v{vLANE}",f"v_lshlrev_b32 v59, 10, v17",f"v_and_b32 v18, 1, v{vG}",f"v_lshl_add_u32 v59, v18, 5, v59",f"v_lshrrev_b32 v18, 1, v{vG}",f"v_lshl_add_u32 v59, v18, 4, v59",
  f"s_lshl_b32 {sT1}, {sCB}, 7",f"s_add_u32 s52, {sRT2}, {sT1}","s_waitcnt lgkmcnt(0)")
for u in range(2): e(f"buffer_load_dwordx4 {V(vRES+4*u,4)}, v59, {SX}, s52 offen offset:{u*64}")
e(f"s_or_b32 {sT0}, s2, {sW}",f"s_cmp_lg_u32 {sT0}, 0","s_cbranch_scc1 Lnn","s_memrealtime s[44:45]","v_mov_b32 v19, 0","s_waitcnt lgkmcnt(0)","s_lshl_b64 s[44:45], s[44:45], 4","s_or_b32 s45, s45, 0x40000000","v_mov_b32 v20, s44","v_mov_b32 v21, s45",
  "s_mov_b64 exec, 1",f"buffer_store_dwordx2 v[20:21], v19, {SDBG}, 0 offen sc1","s_mov_b64 exec, -1","Lnn:")
e(f"v_lshrrev_b32 v{vR4}, 2, v{vLANE}",f"v_mul_u32_u24 v{vWQ}, 3072, v{vR4}",f"v_and_b32 v17, 1, v{vG}",f"v_lshlrev_b32 v17, 1, v17",f"v_xor_b32 v17, v17, v{vLANE}",f"v_and_b32 v17, 3, v17",f"v_lshl_add_u32 v{vWQ}, v17, 4, v{vWQ}",
  f"s_lshl_b32 {sT0}, {sJ}, 6",f"v_add_u32 v{vWQ}, {sT0}, v{vWQ}")
e(f"s_mov_b32 {sL}, 0")
e("s_mov_b64 s[44:45], 0")
if OPT["stamp"]:
    for i in range(30): e(f"s_mov_b32 s{64+i}, 0")
stamp()
wq=dma_wq(); NE=OPT.get("ne",0)
if OPT.get("l0p",0): wq=[]; NE=0
e(f"s_mul_i32 s53, {sW}, {4*32*3072}",f"s_lshl_b32 s54, {sW}, 13"); NF=min(NE,OPT.get("nf",0)); e(*wq[:NF])
if OPT.get("pf",0):
    e(f"s_lshr_b32 {sT0}, {sB}, 3",f"s_lshl_b32 {sT0}, {sT0}, 2",f"s_add_u32 {sT0}, {sT0}, {sW}",f"s_mul_i32 {sT0}, {sT0}, 12288",f"v_lshlrev_b32 v17, 4, v{vLANE}")
    for k in range(12):
        e(f"buffer_load_dwordx4 {V(112+4*k,4)}, v17, {SWQ}, {sT0} offen offset:{(k&3)*1024}")
        if k&3==3: e(f"s_addk_i32 {sT0}, 0x1000")
e(f"s_mov_b32 {sLB}, 0",f"s_mov_b32 {sPH}, 0",f"s_lshl_b32 s47, {sW}, 14",f"s_lshl_b32 s46, {sCB}, 16","s_add_u32 s46, s46, s47",f"s_add_u32 s46, s46, {PO}",f"s_mul_i32 s49, {sW}, 7168",f"s_mul_i32 s48, {sJ}, 114688","s_add_u32 s48, s48, s49",f"s_add_u32 s48, s48, {P1W}",
  f"s_lshl_b32 s50, {sCB}, 2",f"s_add_u32 s50, s50, {sW}","s_mul_i32 s50, s50, 57344",f"s_add_u32 s50, s50, {P2W}",f"s_lshl_b32 s51, {sW}, 12",f"s_mul_i32 s55, {sJ}, 98304","s_add_u32 s55, s55, s51",f"s_add_u32 s55, s55, {PQ}")
for i in range(4): e(f"s_add_u32 {sT0}, {sW}, {i}",f"s_and_b32 {sT0}, {sT0}, 3",f"s_mul_i32 s{[56,99,100,101][i]}, {sT0}, 57344")
def packpath(lab,loads,stores):
    e(f"{lab}:")
    for i,(pre,vo,srd) in enumerate(loads): e(pre,f"buffer_load_dwordx4 {V(64+4*i,4)}, v{vo}, {srd}, {sT3} offen")
    for i,pre in enumerate(stores): e(pre.replace(f"u32 {sT3},",f"u32 s{[2,3,4,5,6,7,98][i]},"))
    e(f"s_mov_b32 s97, {len(stores)}","s_branch Lpk")
for w in (1,2,3): e(f"s_cmp_eq_u32 {sW}, {w}",f"s_cbranch_scc1 Lpk{w}")
e(f"s_mul_i32 {sT0}, {sG}, {32*3072}",f"s_lshl_b32 {sT1}, {sG}, 11",f"s_add_u32 {sT1}, {sT1}, s55")
packpath("Lpk0a",[(f"s_add_u32 {sT3}, {sT0}, {16*ee*3072+p*1024}",vWQ,SWQ) for p in range(3) for ee in range(2)],[f"s_add_u32 {sT3}, {sT1}, {p*32768+ee*1024}" for p in range(3) for ee in range(2)])
e("Lpk1:")
e(f"s_mul_i32 {sT0}, {sJ}, 224")
for q in range(7):
    e(f"v_add_u32 v17, {64*q}, v{vLANE}",f"v_mul_u32_u24 v18, 4682, v17",f"v_lshrrev_b32 v18, 16, v18",f"v_mul_u32_u24 v{52+q}, {3584-224}, v18",f"v_lshl_add_u32 v{52+q}, v17, 4, v{52+q}",f"v_add_u32 v{52+q}, {sT0}, v{52+q}")
e(f"s_mul_i32 {sT3}, {sG}, 114688",f"s_mul_i32 {sT1}, {sG}, 7168",f"s_add_u32 {sT1}, {sT1}, s48",f"s_sub_u32 {sT1}, {sT1}, s49")
for k in range(7): e(f"s_mov_b32 m0, {131072+k*1024}","s_nop 0",f"buffer_load_dwordx4 v{52+k}, {SW1}, {sT3} offen lds")
packpath("Lpk1a",[],[f"s_add_u32 {sT3}, {sT1}, {k*1024}" for k in range(7)])
e("Lpk2:")
e(f"v_lshrrev_b32 v{vWA}, 3, v{vLANE}",f"v_lshlrev_b32 v{vWA}, 10, v{vWA}",f"v_lshlrev_b32 v17, 1, v{vG}",f"v_xor_b32 v17, v17, v{vLANE}",f"v_and_b32 v17, 7, v17",f"v_lshl_add_u32 v{vWA}, v17, 4, v{vWA}",f"s_lshl_b32 {sT0}, {sCB}, 7",f"v_add_u32 v{vWA}, {sT0}, v{vWA}")
e(f"s_lshl_b32 {sT0}, {sG}, 1",f"s_add_u32 {sT0}, {sT0}, {sHB}",f"s_mul_i32 {sT0}, {sT0}, {56*1024}",f"s_lshr_b32 {sT1}, {sG}, 2",f"s_sub_u32 {sT1}, {sT1}, 2",f"s_mul_i32 {sT1}, {sT1}, 57344",f"s_add_u32 {sT1}, {sT1}, s50",
  f"s_and_b32 {sT4}, {sG}, 3",f"s_lshl_b32 {sT2}, {sT4}, 11",f"s_add_u32 {sT2}, {sT2}, {49152-5120}",f"s_add_u32 {sT2}, {sT2}, {sT1}",f"s_mul_i32 {sT4}, {sT4}, 12288",f"s_add_u32 {sT1}, {sT1}, {sT4}",f"s_mul_i32 {sT4}, {sHB}, 7168",f"s_add_u32 {sT1}, {sT1}, {sT4}",
  f"s_cmp_eq_u32 {sHB}, 0",f"s_cselect_b32 {sT2}, {sT1}, {sT2}")
packpath("Lpk2a",[(f"s_add_u32 {sT3}, {sT0}, {k*8192}",vWA,SW2) for k in range(7)],[f"s_add_u32 {sT3}, {sT1 if k<5 else sT2}, {k*1024}" for k in range(7)])
e("Lpk3:")
e(f"v_lshrrev_b32 v{vWA}, 3, v{vLANE}",f"v_lshlrev_b32 v{vWA}, 10, v{vWA}",f"v_lshlrev_b32 v17, 1, v{vG}",f"v_xor_b32 v17, v17, v{vLANE}",f"v_and_b32 v17, 7, v17",f"v_lshl_add_u32 v{vWA}, v17, 4, v{vWA}",f"s_lshl_b32 {sT0}, {sCB}, 7",f"v_add_u32 v{vWA}, {sT0}, v{vWA}")
e(f"s_lshl_b32 {sT0}, {sG}, 1",f"s_add_u32 {sT0}, {sT0}, {sHB}",f"s_lshl_b32 {sT1}, {sT0}, 11",f"s_lshl_b32 {sT0}, {sT0}, 14",f"s_add_u32 {sT1}, {sT1}, s46",f"s_sub_u32 {sT1}, {sT1}, s47")
packpath("Lpk3a",[(f"s_add_u32 {sT3}, {sT0}, {k*8192}",vWA,SWO) for k in range(2)],[f"s_add_u32 {sT3}, {sT1}, {k*1024}" for k in range(2)])
e("Lpk:")
if OPT.get("st5"): stamp()
e(*wq[NF:NE])
if OPT.get("st5"): stamp()
e(f"v_lshlrev_b32 v{vL16}, 4, v{vLANE}",f"v_and_b32 v{vC8}, 3, v{vLANE}",f"v_lshlrev_b32 v{vC8}, 3, v{vC8}")
for i in range(4): e(f"v_mov_b32 v{vONES+i}, 0x3f803f80")
e(f"s_lshl_b32 {sT0}, {sG}, 8",f"s_add_u32 {sT0}, {sT0}, {FL_OFF}",f"v_and_b32 v17, 15, v{vLANE}",f"v_lshl_add_u32 v{vFL}, v17, 3, {sT0}",
  f"s_cmp_eq_u32 {sG}, 0",f"s_cselect_b32 {sT1}, 0, 256",f"v_and_b32 v17, 1, v{vG}",f"v_mul_u32_u24 v17, {sT1}, v17",f"v_sub_u32 v{vFL2}, v{vFL}, v17")
e(f"v_and_b32 v17, 15, v{vLANE}",f"v_lshlrev_b32 v60, 3, v17",f"v_lshl_add_u32 v60, v{vG}, 8, v60")
if OPT.get("st5"): stamp()
e(f"s_cmp_lg_u32 {sW}, 0","s_cbranch_scc1 Lng","v_mov_b32 v19, 0",f"s_mov_b32 {sT2}, 0x40000","Lnp:",f"buffer_load_dwordx2 v[20:21], v19, {SDBG}, 0 offen sc1",f"s_sub_u32 {sT2}, {sT2}, 1","s_cbranch_scc1 Lend","s_waitcnt vmcnt(0)",
  "v_readfirstlane_b32 s44, v20","v_readfirstlane_b32 s45, v21","s_cmp_eq_u32 s45, 0","s_cbranch_scc1 Lnp","Lng:")
e(f"s_waitcnt vmcnt({NE-NF})")
if OPT.get("st5"): stamp()
for u in range(2):
    for i in range(2): e(f"v_permlane16_swap_b32 v{vRES+4*u+i}, v{vRES+4*u+2+i}")
e(f"s_cmp_lg_u32 {sW}, 1","s_cbranch_scc1 Lntr",f"v_mul_u32_u24 v17, 224, v{vR4}",f"v_add_u32 v17, v17, v{vC8}","v_add_u32 v17, 0x20000, v17")
e(*[tr(V(64+4*t+2*ee,2),17,ee*3584+32*t) for t in range(7) for ee in range(2)]); e("Lntr:")
xepi(None,XA_OFF,SA_OFF,0)
e("s_waitcnt lgkmcnt(0)")
for i in range(7):
    if i in (2,6): e(f"s_cmp_le_u32 s97, {i}","s_cbranch_scc1 Lpks")
    e(f"buffer_store_dwordx4 {V(64+4*i,4)}, v{vL16}, {SWS}, s{[2,3,4,5,6,7,98][i]} offen sc1")
e("Lpks:")
if OPT.get("st5"): stamp()
if OPT.get("st5"): stamp()
if OPT.get("st5"): stamp()
ND=OPT.get("nd",10) if wq else 0
if ROT:
    assert NE==0
    e(f"s_and_b32 s83, {sJ}, 3")
    for k in range(4):
        e(f"s_add_u32 {sT0}, s83, {k}",f"s_and_b32 {sT0}, {sT0}, 3",f"s_lshl_b32 s{64+k}, {sT0}, 12",f"s_mul_i32 s{68+k}, {sT0}, 28672",f"s_add_u32 s{68+k}, s{68+k}, s48",
          f"s_mul_i32 s{72+k}, {sT0}, 12288",f"s_add_u32 s{72+k}, s{72+k}, s50",f"s_mul_i32 s{76+k}, {sT0}, 3584")
    for h in range(2): e(f"s_lshl_b32 {sT0}, s83, 1",f"s_add_u32 {sT0}, {sT0}, {sW}",f"s_add_u32 {sT0}, {sT0}, {4*h}",f"s_and_b32 {sT0}, {sT0}, 7",f"s_lshl_b32 {sT0}, {sT0}, 12",f"s_add_u32 s{80+h}, s55, {sT0}",f"s_sub_u32 s{80+h}, s{80+h}, s51")
    e(f"s_add_u32 s83, s83, {sW}","s_and_b32 s83, s83, 3","s_lshl_b32 s82, s83, 14","s_add_u32 s82, s82, s46","s_sub_u32 s82, s82, s47")
e(f"s_mul_i32 s53, {'s83' if ROT else sW}, {4*32*3072}",f"s_lshl_b32 s54, {sW}, 13"); e(*wq[NE:NE+ND]); signal(ND,(),False); e(*wq[NE+ND:])
if OPT.get("st5"): stamp()
e("Llayer:")
XM,XH=0,128; ACC=64; WF=136; CS1,CS3=200,228; CV=200; STV=228
e(f"v_and_b32 v17, 1, v{vG}",f"v_lshl_add_u32 v18, v{vR4}, 6, v{vC8}",f"v_lshl_add_u32 v32, v17, 5, v18",f"v_xor_b32 v33, 32, v32",f"v_add_u32 v34, 0x10000, v32",f"v_add_u32 v35, 0x10000, v33",
  f"s_lshr_b32 {sT0}, {sW}, 1",f"s_add_u32 {sT0}, {sT0}, 1",f"s_lshl_b32 {sT0}, {sT0}, 15",f"s_and_b32 {sT1}, {sW}, 1",f"s_lshl_b32 {sT1}, {sT1}, 5",f"v_xor_b32 v36, {sT1}, v32",f"v_add_u32 v36, {sT0}, v36")
e(f"v_and_b32 v17, 15, v{vLANE}",f"v_lshlrev_b32 v18, 2, v{vG}","v_sub_u32 v17, v17, v18",f"s_mov_b32 {sT0}, 0xf149f2ca",f"v_mov_b32 v19, {sT0}",f"s_or_b32 {sT1}, {sG}, {sW}",f"s_cmp_eq_u32 {sT1}, 0",f"s_cselect_b32 {sT1}, {sT0}, 0")
for i in range(4):
    e(f"v_subrev_u32 v18, {i}, v17","v_and_b32 v37, 0x80000001, v18","v_cmp_eq_u32 vcc, 0, v37",f"v_cndmask_b32_e64 v{40+i}, v19, 0, vcc",
      "v_cmp_eq_u32 vcc, 0x80000000, v37",f"v_cndmask_b32_e64 v{44+i}, v19, 0, vcc",f"v_add_f32 v{48+i}, {sT1}, v{44+i}")
e(f"s_add_u32 {sT1}, {sRT1}, {sLB}",f"s_add_u32 {sT1}, {sT1}, {XA_OFF}",f"v_add_u32 v24, {sT1}, v{vL16}","v_add_u32 v25, 0x4000, v24",
  f"s_lshr_b32 {sT1}, {sRT1}, 4",f"s_add_u32 {sT1}, {sT1}, {sLB}",f"s_add_u32 {sT1}, {sT1}, {SA_OFF}",f"v_add_u32 v27, {sT1}, v60",
  f"s_lshl_b32 {sT0}, {sG}, 17",f"s_add_u32 {sT1}, {sLB}, {XA_OFF-16384}",f"s_add_u32 {sT1}, {sT1}, {sT0}",f"s_lshr_b32 {sT0}, {sT0}, 4",f"s_add_u32 {sT0}, {sT0}, {sLB}",f"s_add_u32 {sT0}, {sT0}, {SA_OFF-1024}",
  f"s_cmp_eq_u32 {sG}, 0",f"s_cselect_b32 {sT1}, 0xffff0000, {sT1}",f"s_cselect_b32 {sT0}, 0xffff0000, {sT0}",f"v_add_u32 v26, {sT1}, v{vL16}",f"v_add_u32 v37, {sT0}, v60")
def p1_reads(s):
    b=WF+28*(s&1)
    return [tr(V(b+4*t+2*ee,2),ad,po+s*2048+ee*1024) for t,(ad,po) in enumerate(((32,0),(33,0),(32,32768),(33,32768),(34,0),(35,0),(36,0))) for ee in range(2)]
XB=79872
e(f"s_lshl_b32 {sT0}, {sW}, 11",f"s_add_u32 {sT0}, {sT0}, {XB}",f"v_lshl_add_u32 v61, v{vLANE}, 3, {sT0}",f"v_and_b32 v17, 15, v{vLANE}",f"v_lshlrev_b32 v17, 5, v17",f"v_lshl_add_u32 v17, v{vG}, 3, v17",f"v_add_u32 v62, {sT0}, v17",
  f"v_lshl_add_u32 v63, v{vR4}, 5, v{vC8}",f"v_add_u32 v63, {sT0}, v63",
  f"v_add_u32 v17, 9216, v17",f"v_lshlrev_b32 v38, 3, v{vLANE}",f"s_cmp_ge_u32 {sW}, 2","s_cselect_b64 vcc, -1, 0",f"s_and_b32 {sT0}, {sW}, 1",f"s_lshl_b32 {sT0}, {sT0}, 9","v_cndmask_b32 v38, v38, v17, vcc",f"s_add_u32 {sT0}, {sT0}, {XB}",f"v_add_u32 v38, {sT0}, v38")
stamp()
e(f"s_cmp_eq_u32 {sL}, 0","s_cbranch_scc1 Lna1")
for i in range(28): e(f"v_accvgpr_read_b32 v{CV+i}, a{CS1+i}")
if OPT.get("l0p",0):
    poll(vFL2); e("s_branch Lna2","Lna1:",f"v_lshlrev_b32 v18, 8, v{vR4}",f"v_lshl_add_u32 v18, v{vC8}, 2, v18",f"v_add_u32 v18, {FL_OFF}, v18")
    poll(18,4); e(*sum([dma_wq2(k) for k in range(6)],[])); e("Lna2:")
else: e("Lna1:"); poll(vFL2)
stamp()
class Ramp:
    def __init__(s,f,l0,la): s.f,s.n,s.la=f,l0,la
    def step(s,k):
        o=[]
        for _ in range(2):
            if s.n<=k+s.la: o+=s.f(s.n); s.n+=1
        return o
class Q:
    def __init__(s): s.q=[]
    def add(s,tag,ins): s.q.append(tag); return ins
    def wait(s,tag): return len(s.q)-1-max(i for i,t in enumerate(s.q) if t==tag)
def xl(dst,ad,s):
    if ROT: return f"buffer_load_dwordx4 {dst}, v{ad}, {SWS}, s{64+(s>>2)} offen offset:{(s&3)*1024} sc1"
    return (f"s_movk_i32 {sT4}, {(s>>2)*4096}\n" if s>=4 else "")+f"buffer_load_dwordx4 {dst}, v{ad}, {SWS}, {sT4 if s>=4 else 0} offen offset:{(s&3)*1024} sc1"+NT("nta")
def stl(dst,ad,o): return [f"buffer_load_dwordx2 {V(dst+2*k,2)}, v{ad}, {SWS}, 0 offen offset:{o+128*k} sc1" for k in range(2)]
LA1=OPT.get("la1",4); assert LA1<=5 and OPT.get("la3",4)<=5; q=Q()
HL=OPT.get("hl",0)
p1x=lambda s:[q.add(s,xl(A(r,4),ad,s)) for r,ad in ((XM+4*s,24),(XM+64+4*s,25),(XH+4*s,26))[:3-HL]] if s<16 else []
if HL:
    assert OPT.get("nwo",0)==0
    e("s_add_u32 m0, s51, 98304",f"v_add_u32 v39, 98304, v{vL16}")
    for k in range(4): e(f"buffer_load_dwordx4 v26, {SWS}, s51 offen offset:{k*1024} sc1 lds")
e(*p1x(0))
I1=min(LA1,OPT.get("i1",2)); r1=Ramp(p1x,I1,LA1)
for s in range(1,I1): e(*p1x(s))
NWO=OPT.get("nwo",0); wo=dma_wo()
e(f"s_cmp_eq_u32 {sL}, 0","s_cbranch_scc1 Lnwo"); e(*wo[:NWO]); e("Lnwo:")
if HL: e(f"s_waitcnt vmcnt({len(q.q)})","s_barrier"); e(*[f"ds_read_b128 {A(XH+4*k,4)}, v39 offset:{k*1024}" for k in range(16)])
cs_part(lambda s,ee:s*2048+ee*1024,CS1,"Lcp1",lambda:e(f"s_waitcnt vmcnt({len(q.q)})\ns_barrier" if OPT.get("l0p",0) else "","v_add_u32 v52, 0xffff8000, v36",f"s_and_b32 {sT0}, {sW}, 1",f"s_lshl_b32 {sT0}, {sT0}, 5",f"v_xor_b32 v53, {sT0}, v34"))
e(*p1_reads(0))
stv=sum([cap(stats,STV+4*m,STV+4*m+1,17+m) for m in range(3)],[]); stv=[stv[i+20*m] for i in range(20) for m in range(3)]
for s in range(16):
    b=WF+28*(s&1)
    vm=q.wait(s)
    mm=[[mfma(V(ACC+24*m+4*t,4),V(b+4*t,4),A(XM+64*m+4*s,4),V(ACC+24*m+4*t,4) if s else "0") for m in range(2)] for t in range(6)]
    mm.append([mfma(V(ACC+48,4),V(b+24,4),A(XH+4*s,4),V(ACC+48,4) if s else "0")])
    ld=r1.step(s)
    if s==2: ld+=[q.add("st",x) for x in stl(STV,27,0)+stl(STV+4,27,1024)+stl(STV+8,37,0)]
    if 8<=s: ld=merge(stv[:8],ld); stv=stv[8:]
    pstep(mm,p1_reads(s+1) if s<15 else [],ld,s==0,vm,s in(0,8))
assert not stv
stamp()
e(f"s_cmp_lg_u32 {sL}, 0","s_cbranch_scc1 Lpkb",f"v_lshlrev_b32 v18, 8, v{vR4}",f"v_lshl_add_u32 v18, v{vC8}, 2, v18",f"v_add_u32 v18, {FL_OFF}, v18")
e("s_barrier") if OPT.get("l0p",0) else poll(18,4)
e(*wo[:NWO]); e("s_branch Lpkd","Lpkb:","s_barrier","Lpkd:")
cs_fin(6,CS1,"Lcf1")
PK=120; XB=79872
n0=len(L)
def scale_tile(acc,cs,st,dst):
    e(pkfma(acc,cs,st),pkfma(acc+2,cs+2,st),pkmul(acc,acc,st,1),pkmul(acc+2,acc+2,st,1),f"v_cvt_pk_bf16_f32 v{dst}, v{acc}, v{acc+1}",f"v_cvt_pk_bf16_f32 v{dst+1}, v{acc+2}, v{acc+3}")
scale_tile(ACC+48,CV+24,STV+8,PK+24); e(f"ds_write_b64 v38, {V(PK+24,2)}")
for m in (1,0):
    for t in (2,3,4,5):
        scale_tile(ACC+24*m+4*t,CV+4*t,STV+4*m,PK+12*m+2*t)
        if t>=4: e(f"ds_write_b64 v62, {V(PK+12*m+2*t,2)} offset:{9216+((m+1)*2+t-4)*512}")
        elif m==1: e(f"ds_write_b64 v61, {V(PK+12*m+2*t,2)} offset:{(4+t-2)*512}")
e("s_waitcnt lgkmcnt(0)","s_barrier")
KP=148; VF=152
for h in range(2):
    e(f"ds_read_b64 {V(KP+2*h,2)}, v61 offset:{h*512}")
    for k in range(3): e(tr(V(VF+8*h+2*k,2),63,9216+(k*2+h)*512))
for m in range(2):
    for t in range(2): scale_tile(ACC+24*m+4*t,CV+4*t,STV+4*m,PK+12*m+2*t)
U=[(m,h) for m in range(2) for h in range(2)]
S=lambda u:168+16*u
def mf16(d,a,b,c): return f"v_mfma_f32_16x16x16_bf16 {d}, {a}, {b}, {c}"
for u,(m,h) in enumerate(U): e(mf16(V(S(u)+4,4),V(PK+12*m+4+2*h,2),V(PK+12*m+2*h,2),V(40,4)))
e("s_waitcnt lgkmcnt(0)")
for u,(m,h) in list(enumerate(U))[::-1]: e(mf16(V(S(u),4),V(KP+2*h,2) if m==0 else V(PK+4+2*h,2),V(PK+12*m+2*h,2),V(48 if m==0 else 44,4)))
def steps(f):
    for u in (3,2,1,0): e(*f(S(u),u))
steps(lambda s,u:[f"v_max3_f32 v{s+8}, v{s+4}, v{s+5}, v{s+6}",f"v_max3_f32 v{s+9}, v{s+7}, v{s}, v{s+1}"])
steps(lambda s,u:[f"v_max3_f32 v{s+8}, v{s+8}, v{s+2}, v{s+3}"])
steps(lambda s,u:[f"v_max_f32 v{s+8}, v{s+8}, v{s+9}"])
for sw in (16,32):
    steps(lambda s,u:[f"v_mov_b32 v{s+9}, v{s+8}"])
    steps(lambda s,u:[f"v_permlane{sw}_swap_b32 v{s+8}, v{s+9}"])
    steps(lambda s,u:[f"v_max_f32 v{s+8}, v{s+8}, v{s+9}"])
e(f"v_mov_b32 v20, 0x3eb8aa3b")
steps(lambda s,u:[f"v_mul_f32 v{s+8}, v20, v{s+8}"])
steps(lambda s,u:[f"v_pk_fma_f32 {V(s+2*i,2)}, {V(s+2*i,2)}, v[20:21], {V(s+8,2)} op_sel_hi:[1,0,0] neg_lo:[0,0,1] neg_hi:[0,0,1]" for i in range(4)]+[f"v_exp_f32 v{s+i}, v{s+i}" for i in range(8)])
steps(lambda s,u:[f"v_cvt_pk_bf16_f32 v{s+12+i}, v{s+2*i}, v{s+2*i+1}" for i in range(4)])
steps(lambda s,u:[mfma(V(s,4),V(VF+8*U[u][1]+2*U[u][0],4),V(s+12,4),"0"),mfma(V(s+4,4),V(vONES,4),V(s+12,4),"0")])
steps(lambda s,u:[f"v_rcp_f32 v{s+4}, v{s+4}"])
steps(lambda s,u:[pkmul(s+2*i,s+2*i,s+4,0) for i in range(2)])
steps(lambda s,u:[f"v_cvt_pk_bf16_f32 v{96+4*U[u][0]+2*U[u][1]+i}, v{s+2*i}, v{s+2*i+1}" for i in range(2)])
body=L[n0:]; del L[n0:]; e(*spread(body,wo[NWO:],0.0,0.5))
e(f"s_lshl_b32 {sT1}, {sJ}, 10",f"s_add_u32 {sT0}, {sRT1}, {sT1}",f"s_add_u32 {sT0}, {sT0}, {sL2}",f"s_add_u32 {sT1}, {sT0}, 0x4000")
e(f"buffer_store_dwordx4 {V(100,4)}, v{vL16}, {SWS}, {sT1} offen sc1",f"buffer_store_dwordx4 {V(96,4)}, v{vL16}, {SWS}, {sT0} offen sc1")
stamp()
w1=dma_w1(0)+dma_w1(1); e(*w1[:8]); signal(8); e(*w1[8:]); e(*dma_w1(2))
e(f"s_mov_b32 {sT2}, 98304"); rd128(sT2,32)
e(f"s_add_u32 {sT0}, {sRT2}, {sL2}",f"v_add_u32 v24, {sT0}, v{vL16}")
def wr2(s,t,c=4,o=0): return A(64+16*s+4*t+o,c) if s<8 else V(112+16*(s-8)+4*t+o,c)
e("s_waitcnt vmcnt(13)" if 0 else "")
for s in range(16): e(*[tr(wr2(s,t,2,2*ee),32+t,s*4096+ee*2048) for t in range(4) for ee in range(2)])
poll(vFL)
stamp()
I2=OPT.get("i2",12)
for s in range(I2): e(xl(A(4*s,4),24,s))
for s in range(16):
    P2D=OPT.get("p2d",1); assert I2>=7
    e(f"s_waitcnt vmcnt({min(15,I2+s-1)-s+(max(0,s-9) if P2D else 0)})")
    e(*merge([mfma(V(64+4*t,4),wr2(s,t),A(4*s,4),V(64+4*t,4) if s else "0") for t in range(4)],[xl(A(4*(s+I2),4),24,s+I2)] if s+I2<16 else [dma_w1(3)[s-9]] if P2D and s>=9 else []))
stamp()
xepi(64,X1_OFF,S1_OFF,0)
w20=dma_w2((0,1,2))
if P2D: e(*w20[:8]); signal(8); w20=w20[8:]
else: e(*dma_w1(3)); signal(7)
e(*w20)
rd128('s51',40)
for t in range(4): e(f'v_add_u32 v{44+t}, 0x10000, v{40+t}',f'v_add_u32 v{48+t}, 0x20000, v{40+t}')
e(f"v_mov_b32 v32, v{vL16}",f"v_add_u32 v33, 57344, v32")
e(f"s_add_u32 {sT1}, {sRT1}, {sL2}",f"s_add_u32 {sT1}, {sT1}, {X1_OFF}",f"v_add_u32 v24, {sT1}, v{vL16}","v_add_u32 v25, 0x4000, v24",
  f"s_lshr_b32 {sT1}, {sRT1}, 4",f"s_add_u32 {sT1}, {sT1}, {sL2}",f"s_add_u32 {sT1}, {sT1}, {S1_OFF}",f"v_add_u32 v27, {sT1}, v60")
def p3_reads(s):
    b=WF+28*(s&1)
    return [f"ds_read_b128 {V(b+4*t,4)}, v{32+(s>>3)} offset:{(s&7)*7168+1024*t}" for t in range(7)]
e(f"s_cmp_eq_u32 {sL}, 0","s_cbranch_scc1 Lna3")
for i in range(28): e(f"v_accvgpr_read_b32 v{CV+i}, a{CS3+i}")
e("Lna3:")
poll(vFL)
stamp()
LA3=OPT.get("la3",4); q=Q(); AC=64
p3x=lambda s:[q.add(s,xl(A(64*m+4*s,4),24+m,s)) for m in range(2)] if s<16 else []
e(*p3x(0))
I3=min(LA3,OPT.get("i3",2)); r3=Ramp(p3x,I3,LA3)
for s in range(1,I3): e(*p3x(s))
stv=sum([cap(stats,STV+4*m,STV+4*m+1,17+m)+[f"v_mul_f32 v{STV+4*m+2}, 0xbfb8aa3b, v{STV+4*m+1}",f"v_mul_f32 v{STV+4*m}, v{STV+4*m}, v{STV+4*m+2}"] for m in range(2)],[]); stv=[stv[i+22*m] for i in range(22) for m in range(2)]
PRE=128
def rd4a(b,off): return [tr(A(b+4*t+2*ee,2),40+(4+t if off<131072 else 8+t),(off&65535)+ee*2048) for t in range(4) for ee in range(2)]
cs_part(lambda s,ee:s*7168+ee*3584,CS3,"Lcp3",lambda:e(f"s_lshl_b32 {sT0}, {sW}, 10",f"v_add_u32 v52, {sT0}, v32",f"s_min_u32 {sT0}, {sT0}, 2048",f"s_add_u32 {sT0}, {sT0}, 4096",f"v_add_u32 v53, {sT0}, v32","v_add_u32 v54, 0x10000, v52","v_add_u32 v55, 0x10000, v53"),1)
for k in range(3): e(*rd4a(PRE+16*k,SLOT[k]*16384))
e(*p3_reads(0))
w2m={11:dma_w2((3,)),12:dma_w2((11,)),13:dma_w2((12,))}
for s in range(16):
    b=WF+28*(s&1)
    vm=q.wait(s)
    mm=[[mfma(V(AC+28*m+4*t,4),V(b+4*t,4),A(64*m+4*s,4),V(AC+28*m+4*t,4) if s else "0") for m in range(2)] for t in range(7)]
    ld=r3.step(s)
    if s in w2m: ld+=[q.add("w",x) for x in w2m[s]]
    if s==2: ld+=[q.add("st",x) for x in stl(STV,27,0)+stl(STV+4,27,1024)]
    if 9<=s: ld=merge(stv[:7],ld); stv=stv[7:]
    pstep(mm,p3_reads(s+1) if s<15 else [],ld,s==0,vm,s in(0,8),1)
stamp()
assert not stv
e("s_waitcnt vmcnt(8)"); e(*rd4a(PRE+48,SLOT[3]*16384))
e("s_barrier")
cs_fin(7,CS3,"Lcf3")
n0=len(L)
e(f"s_lshr_b32 {sT0}, {sRT1}, 14",f"s_mul_i32 {sT0}, {sT0}, 57344",f"s_mul_i32 {sT1}, {sJ}, 3584",f"s_add_u32 {sT0}, {sT0}, {sT1}",f"s_add_u32 {sT0}, {sT0}, {sL2}",f"s_add_u32 {sT0}, {sT0}, {H_OFF}",f"v_lshlrev_b32 v34, 3, v{vLANE}","v_mov_b32 v20, 0xbfb8aa3b")
for m in range(2):
    st=STV+4*m
    for t0 in (0,2,4,6):
        n=8 if t0<6 else 4; a=AC+28*m+4*t0; c=CV+4*t0; tm=160; pk=120+16*m+2*t0
        for i in range(0,n,2): e(pkmul(a+i,a+i,st+2,0))
        for i in range(0,n,2): e(pkfma(a+i,c+i,st))
        for i in range(n): e(f"v_exp_f32 v{tm+i}, v{a+i}")
        for i in range(0,n,2): e(f"v_pk_fma_f32 {V(tm+i,2)}, {V(tm+i,2)}, v[20:21], v[20:21] op_sel_hi:[1,0,0]")
        for i in range(n): e(f"v_rcp_f32 v{tm+i}, v{tm+i}")
        for i in range(0,n,2): e(f"v_pk_mul_f32 {V(a+i,2)}, {V(a+i,2)}, {V(tm+i,2)}")
        for i in range(n//2): e(f"v_cvt_pk_bf16_f32 v{pk+i}, v{a+2*i}, v{a+2*i+1}")
        if t0<6: e(f"buffer_store_dwordx4 {V(pk,4)}, v{vL16}, {SWS}, {sT0} offen offset:{t0*512} sc1")
        else: e(f"buffer_store_dwordx2 {V(pk,2)}, v34, {SWS}, {sT0} offen offset:3072 sc1")
    if m==0: e(f"s_add_u32 {sT0}, {sT0}, 57344")
w2=dma_w2(range(4,11))+["s_waitcnt lgkmcnt(0)\n"+dma_w2((13,))[0]]+dma_w2((13,))[1:]; N2=OPT.get("n2",8); N3=OPT.get("n3",8)
body=L[n0:]; del L[n0:]; e(*spread(body,w2[:N2],0.0,0.8))
stamp()
e(*w2[N2:N2+N3]); signal(N3)
e(*w2[N2+N3:])
def rd4v(b,off): return [tr(V(b+4*t+2*ee,2),40+(t if off<65536 else 4+t if off<131072 else 8+t),(off&65535)+ee*2048) for t in range(4) for ee in range(2)]
e(f"s_lshr_b32 {sT0}, {sRT2}, 14",f"s_sub_u32 {sT0}, {sT0}, {sW}",f"s_mul_i32 {sT0}, {sT0}, 57344",f"s_mul_i32 {sT1}, {sW}, 14336",f"s_add_u32 {sT0}, {sT0}, {sT1}",f"s_add_u32 {sT0}, {sT0}, {sL2}",f"s_add_u32 {sT0}, {sT0}, {H_OFF}",
  f"v_add_u32 v36, {sT0}, v{vL16}",f"v_lshl_add_u32 v37, v{vLANE}, 3, {sT0}")
for i in range(1,4): e(f"s_add_u32 {sT0}, {sW}, {i}",f"s_and_b32 {sT0}, {sT0}, 3",f"s_mul_i32 {sT0}, {sT0}, 12288",f"s_add_u32 {sT0}, {sT0}, {98304+(i-1)*4096}",f"v_add_u32 v{16+i}, {sT0}, v{vL16}")
e(f"s_mul_i32 {sT0}, {sW}, 12288",f"s_add_u32 {sT0}, {sT0}, 98304",f"v_add_u32 v20, {sT0}, v{vL16}")
poll(vFL)
stamp()
def af(s,i,c=4,o=0):
    return A(((s%8)*4+i)*4+o,c)
q=Q(); LA4=OPT.get("la4",4)
def p4x(s):
    o=[]
    for i in range(4 if s<14 else 0):
        if s<12:
            jj,u=divmod(s,3); o.append(q.add(s,f"s_add_u32 {sT4}, s{[56,99,100,101][i]}, {f's{76+jj}' if ROT else jj*3584}\nbuffer_load_dwordx4 {af(s,i)}, v36, {SWS}, {sT4} offen offset:{u*1024} sc1"+NT("nth")))
        else:
            for ee in range(2):
                jj=(s-12)*2+ee; o.append(q.add(s,f"s_add_u32 {sT4}, s{[56,99,100,101][i]}, {jj*3584}\nbuffer_load_dwordx2 {af(s,i,2,2*ee)}, v37, {SWS}, {sT4} offen offset:3072 sc1"+NT("nth")))
    return o
I4=min(LA4,OPT.get("i4",3)); r4=Ramp(p4x,I4,LA4)
for s in range(I4): e(*p4x(s))
WB=lambda s: 232 if s&1 else 216
WR=lambda s,t: A(PRE+16*s+4*t,4) if s<4 else V(WB(s)+4*t,4)
for s in range(14):
    vm=q.wait(s)
    mm=[[mfma(V(64+16*i+4*t,4),WR(s,t),af(s,i),V(64+16*i+4*t,4) if s else "0") for i in range(4)] for t in range(4)]
    ld=r4.step(s)
    if s==13:
        mi=lambda i:[mm[t][i] for t in range(4)]; wr=lambda i:[f"ds_write_b128 v{16+i}, {V(64+16*i+4*t,4)} offset:{t*1024}" for t in range(4)]
        e(f"s_waitcnt vmcnt({vm}) lgkmcnt(0)","s_barrier"); e(*(mi(1)+mi(2)+merge(mi(3),wr(1))+merge(mi(0),wr(2))+wr(3))); continue
    pstep(mm,rd4v(WB(s+1),SLOT[s+1]*16384) if 3<=s<13 else [],ld,s<4,vm,s in(0,7))
stamp()
n0=len(L)
e("s_waitcnt lgkmcnt(0)","s_barrier")
for k in range(12): e(f"ds_read_b128 {V(128+4*k,4)}, v20 offset:{k*1024}")
e("s_waitcnt lgkmcnt(8)")
for i in range(8): e(f"v_pk_add_f32 {V(64+2*i,2)}, {V(64+2*i,2)}, {V(128+2*i,2)}")
e("s_waitcnt lgkmcnt(0)")
for i in range(8): e(f"v_pk_add_f32 {V(144+2*i,2)}, {V(144+2*i,2)}, {V(160+2*i,2)}")
for i in range(8): e(f"v_pk_add_f32 {V(128+2*i,2)}, {V(64+2*i,2)}, {V(144+2*i,2)}")
red=L[n0:]; del L[n0:]
e(f"s_cmp_lg_u32 {sL}, 0","s_cbranch_scc1 Lout")
wq=sum([dma_wq2(k) for k in range(6)],[]); N1=OPT.get("n1",4)
e(*spread(red,wq[:N1],0.0,0.4))
xepi(128,XA_OFF,SA_OFF,16*MB)
stamp()
e(*wq[N1:N1+10]); signal(10); e(*wq[N1+10:])
e(f"s_mov_b32 {sL}, 1",f"s_mov_b32 {sLB}, {16*MB}","s_branch Llayer")
e("Lout:")
e(*red)
xepi(128,0,0,0,False)
for u in range(2):
    for i in range(2): e(f"v_permlane16_swap_b32 v{vRES+4*u+i}, v{vRES+4*u+2+i}")
for u in range(2): e(f"buffer_store_dwordx4 {V(vRES+4*u,4)}, v59, {SOUT}, s52 offen offset:{u*64}"+(" sc1" if OPT.get("osc") else ""))
e("Lfin:","s_waitcnt vmcnt(0)")
if OPT["stamp"]:
    stamp()
    e(f"s_cmp_lg_u32 {sW}, 0","s_cbranch_scc1 Lend",f"s_lshl_b32 {sT0}, {sB}, 7",f"s_add_u32 {sT0}, {sT0}, {ST_OFF}","s_mov_b64 exec, 1","v_mov_b32 v18, 0")
    for i in range(30): e(f"v_mov_b32 v17, s{64+i}",f"buffer_store_dword v17, v18, {SWS}, {sT0} offen offset:{4*i}")
if OPT.get("dbgst"):
    e(f"s_cmp_lg_u32 {sB}, {OPT['dbgst']}","s_cbranch_scc1 Lend")
    for i in list(range(1,13))+[16,28]: e(f"s_sub_u32 s94, s{64+i}, s64","v_mov_b32 v17, s94",f"buffer_store_dword v17, v18, {SDBG}, 0 offen offset:{4*(min(i,13)+(i==28))+4}")
e("Lend:","s_endpgm")
K=NAME+"_kernel"
hdr=f"""; @launch grid=(256,1,1) block=(256,1,1) lds=163840
.amdgcn_target "amdgcn-amd-amdhsa--gfx950"
.text
.globl {K}
.p2align 8
.type {K},@function
{K}:
"""
ftr=f"""
.section .rodata,"a"
.p2align 6
.amdhsa_kernel {K}
  .amdhsa_next_free_vgpr 512
  .amdhsa_next_free_sgpr 102
  .amdhsa_accum_offset 256
  .amdhsa_group_segment_fixed_size 0
  .amdhsa_kernarg_size 72
  .amdhsa_user_sgpr_count 2
  .amdhsa_user_sgpr_kernarg_segment_ptr 1
  .amdhsa_system_sgpr_workgroup_id_x 1
.end_amdhsa_kernel
"""
open(sys.argv[1],"w").write(hdr+"\n".join(fix(L))+ftr)
print("stamps",nst[0],"lines",len(L))
```

```python
import sys
from asmlib import fix
NAME="interleave_layers__sliding_local_dilated__dense_activation_silu__prompt"
OPT=dict(stamp=0, stop=99, nodot=0)
for a in sys.argv[2:]:
    k,v=a.split("="); OPT[k]=int(v)
L=[]
def e(*x):
    for t in x:
        for u in t.split("\n"):
            u=u.strip()
            if u: L.append(u)
def V(n,c=1): return f"v{n}" if c==1 else f"v[{n}:{n+c-1}]"
def A(n,c=1): return f"a{n}" if c==1 else f"a[{n}:{n+c-1}]"
def merge(main,*fill):
    out=[]; n=len(main); pos=[0]*len(fill)
    for i,m in enumerate(main):
        out.append(m)
        for k,f in enumerate(fill):
            tgt=(len(f)*(i+1)+n-1)//n
            while pos[k]<min(tgt,len(f)): out.append(f[pos[k]]); pos[k]+=1
    return out
MB=1<<20
O_OFF,X1_OFF,H_OFF,XA_OFF,SA_OFF,S1_OFF,FL_OFF,ST_OFF=0,2*MB,4*MB,12*MB,14*MB,14*MB+262144,40*MB,41*MB
SX,SWQ,SWO,SW1,SW2,SWS,SOUT,SDBG="s[4:7]","s[8:11]","s[12:15]","s[16:19]","s[20:23]","s[24:27]","s[28:31]","s[32:35]"
sG,sJ,sW,sL="s36","s37","s38","s39"
sKS=40
sES,sT0,sT1,sT2,sLB,sPH,sHB,sCB="s56","s57","s58","s59","s60","s61","s62","s63"
sB="s96"; sONE="s97"; sTO="s98"
vLANE,vL16,vRES,vX1,vWQ,vFL,vFL2=0,1,2,10,11,12,13
vR4,vG,vC8=14,15,16
vONES=28
nst=[0]; skip=0
def stamp(x=False):
    global skip
    skip+=1
    if OPT.get('st4') and skip in (2,7,8,9,14): return
    if OPT["stamp"]:
        i=nst[0]; nst[0]+=1
        if i>=15: return
        e("s_memtime s[94:95]" if OPT.get("clk") else "s_memrealtime s[94:95]","s_waitcnt lgkmcnt(0)",f"s_cmp_eq_u32 {sL}, 0",f"s_cselect_b32 s{64+i}, s94, s{64+i}",f"s_cselect_b32 s{79+i}, s{79+i}, s94")
def signal(n=0,rb=(),st=True):
    lab=f"Lsig{len(L)}"
    e(f"s_add_u32 {sPH}, {sPH}, 1",f"s_or_b32 {sT0}, s44, {sPH}",f"v_mov_b32 v22, {sT0}","v_mov_b32 v23, s45",f"s_lshl_b32 {sT1}, {sJ}, 3",f"s_cmp_lg_u32 {sW}, 0",f"s_waitcnt vmcnt({n})")
    if OPT.get("st3") and st: stamp(); e(f"s_cmp_lg_u32 {sW}, 0")
    e("s_barrier",f"s_cbranch_scc1 {lab}","s_mov_b64 exec, 1",f"buffer_store_dwordx2 v[22:23], v{vFL}, {SWS}, {sT1} offen sc1","s_mov_b64 exec, -1",f"{lab}:")
def poll(vaddr,n=1,pre=False):
    lab=f"Lpoll{len(L)}"
    e(f"s_cmp_lg_u32 {sW}, 0",f"s_cbranch_scc1 {lab}x",f"s_mov_b32 {sTO}, 0x40000",f"s_or_b32 {sT0}, s44, {sPH}",f"s_sub_u32 {sT1}, 16, {sPH}",f"s_branch {lab}p" if pre else "",f"{lab}:")
    if n==4: e(f"buffer_load_dwordx4 v[248:251], v{vaddr}, {SWS}, 0 offen sc1",f"buffer_load_dwordx4 v[252:255], v{vaddr}, {SWS}, 0 offen offset:16 sc1")
    else: e(f"buffer_load_dwordx2 v[248:249], v{vaddr}, {SWS}, 0 offen sc1")
    e(f"{lab}p:",f"s_sub_u32 {sTO}, {sTO}, 1","s_cbranch_scc1 Lend","s_waitcnt vmcnt(0)")
    for k in range(n):
        e(f"v_subrev_u32 v{248+2*k}, {sT0}, v{248+2*k}",f"v_xor_b32 v{249+2*k}, s45, v{249+2*k}")
        if k: e(f"v_max_u32 v248, v248, v{248+2*k}",f"v_or_b32 v249, v249, v{249+2*k}")
    e(f"v_cmp_gt_u32 vcc, {sT1}, v248","v_cmp_eq_u32 s[2:3], 0, v249","s_and_b64 vcc, vcc, s[2:3]","s_cmp_eq_u64 vcc, exec",f"s_cbranch_scc1 {lab}x",f"s_sleep {OPT.get('slp',6)}" if OPT.get('slp',6) else "",f"s_branch {lab}",f"{lab}x:","s_waitcnt vmcnt(0) lgkmcnt(0)","s_barrier")
def dma(vo,srd,so): e(f"buffer_load_dwordx4 v{vo}, {srd}, {so} offen lds")
def xsum(r,t,op="v_add_f32"):
    e(f"v_mov_b32 v{t}, v{r}",f"v_permlane16_swap_b32 v{r}, v{t}",f"{op} v{r}, v{r}, v{t}",f"v_mov_b32 v{t}, v{r}",f"v_permlane32_swap_b32 v{r}, v{t}",f"{op} v{r}, v{r}, v{t}")
def stats(su,sq,t):
    e(f"v_add_f32 v{su}, v{su}, v{su+2}",f"v_add_f32 v{sq}, v{sq}, v{sq+2}")
    xsum(su,t); xsum(sq,t)
    e(f"v_mul_f32 v{su}, 0x3b000000, v{su}",f"v_mul_f32 v{sq}, 0x3b000000, v{sq}",f"v_fma_f32 v{sq}, -v{su}, v{su}, v{sq}",f"v_max_f32 v{sq}, 0, v{sq}",
      f"v_add_f32 v{sq}, 0x3727c5ac, v{sq}",f"v_rsq_f32 v{sq}, v{sq}")
def mfma(d,a,b,c): return f"v_mfma_f32_16x16x32_bf16 {d}, {a}, {b}, {c}"
def tr(d,ad,off): return f"ds_read_b64_tr_b16 {d}, v{ad} offset:{off}"

ROT=OPT.get("rot",0 if OPT["stamp"] else 1); assert not(ROT and OPT["stamp"])
NT=lambda k:" nt" if OPT.get(k,0) else ""
sL2="0" if OPT.get("reuse",0) else sLB
sT3,sT4="s40","s41"
sRT2,sRT1="s42","s43"
vWA=10
def D(m0,so,vo,srd): return f"{m0}\n{so}\nbuffer_load_dwordx4 v{vo}, {srd}, {sT3} offen lds"
def dma_wq():
    return [D(f"s_add_u32 m0, s54, {p*32768+s*2048+ee*1024}",f"s_add_u32 {sT3}, s53, {(32*s+16*ee)*3072+p*1024}",vWQ,SWQ) for s in range(4) for ee in range(2) for p in range(3)]
PQ,PO,P1W,P2W=44*MB,46*MB,47*MB,50*MB
def PD(ldsb,lds,srcb,src,n):
    o=[]
    for i in range(n):
        pre=f"s_add_u32 m0, {ldsb}, {lds+i*1024}\ns_add_u32 {sT3}, {srcb}, {src+i*1024}\n" if i%4==0 else ""
        o.append(pre+f"buffer_load_dwordx4 v{vL16}, {SWS}, {sT3} offen offset:{(i%4)*1024} sc1 lds")
    return o
def dma_wo(): return PD("s47",98304,"s82" if ROT else "s46",0,16)
def dma_w1(k): return PD("s49",k*28672,f"s{68+k}",0,7) if ROT else PD("s49",k*28672,"s48",k*28672,7)
SLOT={0:7,1:8,2:9,3:7,11:8,12:9,13:7,**{4+k:k for k in range(7)}}
def dma_w2(steps): return [x for st in steps for x in (PD("s51",SLOT[st]*16384,f"s{72+st//3}",(st%3)*4096,4) if ROT and st<12 else PD("s51",SLOT[st]*16384,"s50",st*4096,4))]
def dma_wq2(k): return PD("s51",k*16384,f"s{80+(k&1)}",(k>>1)*32768,4) if ROT else PD("s51",k*16384,"s55",k*16384,4)
def rd128(base,v0):
    e(f"v_lshrrev_b32 v17, 1, v{vR4}",f"v_and_b32 v17, 3, v17",f"v_lshl_add_u32 v18, v{vR4}, 7, v{vC8}",f"v_add_u32 v18, {base}, v18")
    for t in range(4): e(f"v_xor_b32 v{v0+t}, {t}, v17",f"v_lshl_add_u32 v{v0+t}, v{v0+t}, 5, v18")
def cap(f,*a):
    n=len(L); f(*a); r=L[n:]; del L[n:]; return r
def spread(main,fill,lo=0.0,hi=1.0):
    m2=[]
    for x in main:
        if m2 and m2[-1].split("\n")[-1].startswith("s_cmp"): m2[-1]+="\n"+x
        else: m2.append(x)
    main=m2
    n=len(main); a=int(n*lo); b=max(a+1,int(n*hi)); return main[:a]+merge(main[a:b],fill)+main[b:]
def pkfma(a,c,mean): return f"v_pk_fma_f32 {V(a,2)}, {V(mean,2)}, {V(c,2)}, {V(a,2)} op_sel_hi:[0,1,1] neg_lo:[1,0,0] neg_hi:[1,0,0]"
def pkmul(d,a,pair,hi): return f"v_pk_mul_f32 {V(d,2)}, {V(a,2)}, {V(pair,2)} "+("op_sel:[0,1] op_sel_hi:[1,1]" if hi else "op_sel_hi:[1,0]")
def xepi(acc,xoff,soff,nxt,st=True):
    for k in range(8):
        r=vRES+k
        e(f"v_lshlrev_b32 v{96+2*k}, 16, v{r}",f"v_and_b32 v{97+2*k}, 0xffff0000, v{r}")
        if acc is not None: e(f"v_pk_add_f32 {V(96+2*k,2)}, {V(96+2*k,2)}, {V(acc+2*k,2)}",f"v_cvt_pk_bf16_f32 v{r}, v{96+2*k}, v{97+2*k}")
    if not st: return
    e(f"s_lshl_b32 {sT1}, {sCB}, 11",f"s_add_u32 {sT1}, {sT1}, {sRT2}",f"s_add_u32 {sT1}, {sT1}, {sL2}",f"s_add_u32 s53, {sT1}, {xoff+nxt}")
    for u in range(2): e(f"buffer_store_dwordx4 {V(vRES+4*u,4)}, v{vL16}, {SWS}, s53 offen offset:{u*1024} sc1")
    e(f"v_pk_mul_f32 v[20:21], v[96:97], v[96:97]")
    for k in range(1,8): e(f"v_pk_fma_f32 v[20:21], {V(96+2*k,2)}, {V(96+2*k,2)}, v[20:21]",f"v_pk_add_f32 v[96:97], v[96:97], {V(96+2*k,2)}")
    e("v_add_f32 v21, v20, v21","v_add_f32 v20, v96, v97")
    xsum(20,17); xsum(21,18)
    e(f"s_lshr_b32 {sT1}, {sRT2}, 4",f"s_lshl_b32 {sT0}, {sCB}, 7",f"s_add_u32 {sT1}, {sT1}, {sT0}",f"s_add_u32 {sT1}, {sT1}, {sL2}",f"s_add_u32 s54, {sT1}, {soff+nxt}",f"v_lshlrev_b32 v17, 3, v{vLANE}",
      "s_mov_b64 exec, 0xffff",f"buffer_store_dwordx2 v[20:21], v17, {SWS}, s54 offen sc1","s_mov_b64 exec, -1")
XRB=[f"buffer_load_dwordx4 v[248:251], v{vL16}, {SWS}, s53 offen offset:{u*1024} sc1" for u in range(2)]+[f"v_and_b32 v17, 0x70, v{vL16}",f"buffer_load_dwordx4 v[248:251], v17, {SWS}, s54 offen sc1"]
def cs_part(off,cs,lab,pre,R=2):
    e(f"s_cmp_lg_u32 {sL}, 0",f"s_cbranch_scc1 {lab}"); pre()
    rd=lambda s:[tr(V(WF+8*(s%6)+4*t+2*ee,2),52+t+2*(off(s,ee)>>16),off(s,ee)&65535) for t in range(2) for ee in range(2)]
    if R==1: rd=lambda s:[f"ds_read_b128 {V(WF+8*(s%6)+4*t,4)}, v{52+t+2*(off(s,0)>>16)} offset:{off(s,0)&65535}" for t in range(2)]
    for s in range(3): e(*rd(s))
    for s in range(16):
        e(f"s_waitcnt lgkmcnt({2*R*min(2,15-s)})")
        e(*[mfma(A(cs+4*t,4),V(WF+8*(s%6)+4*t,4),V(vONES,4),A(cs+4*t,4) if s else "0") for t in range(2)])
        if s+3<16: e(*rd(s+3))
    e(f"{lab}:")
def cs_fin(nt,cs,lab):
    e(f"s_cmp_lg_u32 {sL}, 0",f"s_cbranch_scc1 {lab}")
    e(f"v_lshlrev_b32 v17, 4, v{vG}",f"s_lshl_b32 {sT0}, {sW}, 6",f"v_add_u32 v19, {sT0}, v17","s_mov_b32 exec_lo, 0x10001","s_mov_b32 exec_hi, 0x10001")
    e(f"ds_write_b128 v19, {A(cs,4)}",f"ds_write_b128 v19, {A(cs+4,4)} offset:256","s_mov_b64 exec, -1","s_waitcnt lgkmcnt(0)","s_barrier")
    for R in (V,A):
        for t in range(7): e(f"ds_read_b128 {R((CV if R is V else cs)+4*t,4)}, v{19 if t>=nt else 17} offset:{128 if t>=nt else t*64}")
    e("s_waitcnt lgkmcnt(0)")
    if nt==7: e("s_barrier")
    e(f"{lab}:")
def pstep(groups,nxt,ld,first,vm,later,R=2):
    nt=len(groups); out=[]; k=0
    for t,g in enumerate(groups):
        if first: w=f"s_waitcnt vmcnt({vm}) lgkmcnt(0)" if t==0 else None
        else:
            n=R*(nt-1-t)+(R*t if nxt else 0)
            if OPT.get("hw",1): n=max(0,n-R) if t+1<nt else n
            w=(f"s_waitcnt vmcnt({vm}) lgkmcnt({n})" if t==0 else f"s_waitcnt lgkmcnt({n})" if not(OPT.get("hw",1) and t&1) else None)
        if w: out.append(w)
        if t==0 and later and OPT.get("st4"): out+=cap(stamp,True); out.append("s_nop 0")
        r=nxt[R*t:R*t+R] if nxt else []
        tgt=(len(ld)*(t+1)+nt-1)//nt; l=ld[k:tgt]; k=max(k,tgt)
        out+=merge(g,r,l)
    e(*out)
e(f"s_cmp_ge_u32 s2, 256","s_cbranch_scc1 Lend",f"s_mov_b32 {sB}, s2")
e("s_load_dwordx2 s[4:5], s[0:1], 0","s_load_dwordx2 s[8:9], s[0:1], 8","s_load_dwordx2 s[12:13], s[0:1], 16","s_load_dwordx2 s[16:17], s[0:1], 32","s_load_dwordx2 s[20:21], s[0:1], 40",
  "s_load_dwordx2 s[24:25], s[0:1], 64","s_load_dwordx2 s[28:29], s[0:1], 48","s_load_dwordx2 s[32:33], s[0:1], 56")
for b,n in ((4,2*MB),(8,512*3072),(12,512*1024),(16,512*3584),(20,1792*1024),(24,64*MB),(28,2*MB),(32,256)):
    e(f"s_mov_b32 s{b+2}, {n}",f"s_mov_b32 s{b+3}, 0x20000")
e(f"v_lshrrev_b32 v17, 6, v0",f"v_and_b32 v{vLANE}, 63, v0",f"v_readfirstlane_b32 {sW}, v17",
  *([f"s_and_b32 {sT0}, s2, 7",f"s_lshr_b32 {sT1}, s2, 3",f"s_and_b32 {sJ}, {sT1}, 15",f"s_lshr_b32 {sT1}, {sT1}, 4",f"s_lshl_b32 {sG}, {sT0}, 1",f"s_add_u32 {sG}, {sG}, {sT1}",
  f"s_lshr_b32 {sHB}, {sJ}, 3",f"s_and_b32 {sCB}, {sJ}, 7"] if OPT.get("x2",3)==0 else
  [f"s_and_b32 {sG}, s2, 6",f"s_lshl_b32 {sG}, {sG}, 1",f"s_lshr_b32 {sT1}, s2, 6",f"s_add_u32 {sG}, {sG}, {sT1}",f"s_bfe_u32 {sJ}, s2, 0x30003",f"s_and_b32 {sT0}, s2, 1",f"s_lshl_b32 {sT1}, {sT0}, 3",f"s_add_u32 {sJ}, {sJ}, {sT1}",
  ]+([f"s_bfe_u32 {sHB}, {sJ}, 0x10002",f"s_and_b32 {sCB}, {sJ}, 3",f"s_lshl_b32 {sT0}, {sT0}, 2",f"s_add_u32 {sCB}, {sCB}, {sT0}"] if OPT.get("x2",3)==1 else [f"s_lshr_b32 {sHB}, {sJ}, 3",f"s_and_b32 {sCB}, {sJ}, 7"]) if OPT.get("x2",3)&1 else
  [f"s_and_b32 {sG}, s2, 4",f"s_lshl_b32 {sG}, {sG}, 1",f"s_lshr_b32 {sT1}, s2, 5",f"s_add_u32 {sG}, {sG}, {sT1}",f"s_bfe_u32 {sJ}, s2, 0x20003",f"s_and_b32 {sT0}, s2, 3",f"s_lshl_b32 {sT1}, {sT0}, 2",f"s_add_u32 {sJ}, {sJ}, {sT1}",
  f"s_bfe_u32 {sHB}, {sJ}, 0x10001",f"s_and_b32 {sCB}, {sJ}, 1",f"s_lshl_b32 {sT0}, {sT0}, 1",f"s_add_u32 {sCB}, {sCB}, {sT0}"]),
  f"s_lshl_b32 {sT0}, {sG}, 3",f"s_lshl_b32 {sT1}, {sHB}, 2",f"s_add_u32 {sT1}, {sT1}, {sT0}",f"s_add_u32 {sT1}, {sT1}, {sW}",f"s_lshl_b32 {sRT2}, {sT1}, 14",f"s_lshl_b32 {sT1}, {sW}, 1",f"s_add_u32 {sT1}, {sT1}, {sT0}",f"s_lshl_b32 {sRT1}, {sT1}, 14")
e(f"v_lshrrev_b32 v{vG}, 4, v{vLANE}",f"v_and_b32 v17, 15, v{vLANE}",f"v_lshlrev_b32 v59, 10, v17",f"v_and_b32 v18, 1, v{vG}",f"v_lshl_add_u32 v59, v18, 5, v59",f"v_lshrrev_b32 v18, 1, v{vG}",f"v_lshl_add_u32 v59, v18, 4, v59",
  f"s_lshl_b32 {sT1}, {sCB}, 7",f"s_add_u32 s52, {sRT2}, {sT1}","s_waitcnt lgkmcnt(0)")
for u in range(2): e(f"buffer_load_dwordx4 {V(vRES+4*u,4)}, v59, {SX}, s52 offen offset:{u*64}")
e(f"s_or_b32 {sT0}, s2, {sW}",f"s_cmp_lg_u32 {sT0}, 0","s_cbranch_scc1 Lnn","s_memrealtime s[44:45]","v_mov_b32 v19, 0","s_waitcnt lgkmcnt(0)","s_lshl_b64 s[44:45], s[44:45], 4","s_or_b32 s45, s45, 0x40000000","v_mov_b32 v20, s44","v_mov_b32 v21, s45",
  "s_mov_b64 exec, 1",f"buffer_store_dwordx2 v[20:21], v19, {SDBG}, 0 offen sc1","s_mov_b64 exec, -1","Lnn:")
e(f"v_lshrrev_b32 v{vR4}, 2, v{vLANE}",f"v_mul_u32_u24 v{vWQ}, 3072, v{vR4}",f"v_and_b32 v17, 1, v{vG}",f"v_lshlrev_b32 v17, 1, v17",f"v_xor_b32 v17, v17, v{vLANE}",f"v_and_b32 v17, 3, v17",f"v_lshl_add_u32 v{vWQ}, v17, 4, v{vWQ}",
  f"s_lshl_b32 {sT0}, {sJ}, 6",f"v_add_u32 v{vWQ}, {sT0}, v{vWQ}")
e(f"s_mov_b32 {sL}, 0")
e("s_mov_b64 s[44:45], 0")
if OPT["stamp"]:
    for i in range(30): e(f"s_mov_b32 s{64+i}, 0")
stamp()
wq=dma_wq(); NE=OPT.get("ne",0)
if OPT.get("l0p",0): wq=[]; NE=0
e(f"s_mul_i32 s53, {sW}, {4*32*3072}",f"s_lshl_b32 s54, {sW}, 13"); NF=min(NE,OPT.get("nf",0)); e(*wq[:NF])
if OPT.get("pf",0):
    e(f"s_lshr_b32 {sT0}, {sB}, 3",f"s_lshl_b32 {sT0}, {sT0}, 2",f"s_add_u32 {sT0}, {sT0}, {sW}",f"s_mul_i32 {sT0}, {sT0}, 12288",f"v_lshlrev_b32 v17, 4, v{vLANE}")
    for k in range(12):
        e(f"buffer_load_dwordx4 {V(112+4*k,4)}, v17, {SWQ}, {sT0} offen offset:{(k&3)*1024}")
        if k&3==3: e(f"s_addk_i32 {sT0}, 0x1000")
e(f"s_mov_b32 {sLB}, 0",f"s_mov_b32 {sPH}, 0",f"s_lshl_b32 s47, {sW}, 14",f"s_lshl_b32 s46, {sCB}, 16","s_add_u32 s46, s46, s47",f"s_add_u32 s46, s46, {PO}",f"s_mul_i32 s49, {sW}, 7168",f"s_mul_i32 s48, {sJ}, 114688","s_add_u32 s48, s48, s49",f"s_add_u32 s48, s48, {P1W}",
  f"s_lshl_b32 s50, {sCB}, 2",f"s_add_u32 s50, s50, {sW}","s_mul_i32 s50, s50, 57344",f"s_add_u32 s50, s50, {P2W}",f"s_lshl_b32 s51, {sW}, 12",f"s_mul_i32 s55, {sJ}, 98304","s_add_u32 s55, s55, s51",f"s_add_u32 s55, s55, {PQ}")
for i in range(4): e(f"s_add_u32 {sT0}, {sW}, {i}",f"s_and_b32 {sT0}, {sT0}, 3",f"s_mul_i32 s{[56,99,100,101][i]}, {sT0}, 57344")
def packpath(lab,loads,stores):
    e(f"{lab}:")
    for i,(pre,vo,srd) in enumerate(loads): e(pre,f"buffer_load_dwordx4 {V(64+4*i,4)}, v{vo}, {srd}, {sT3} offen")
    for i,pre in enumerate(stores): e(pre.replace(f"u32 {sT3},",f"u32 s{[2,3,4,5,6,7,98][i]},"))
    e(f"s_mov_b32 s97, {len(stores)}","s_branch Lpk")
for w in (1,2,3): e(f"s_cmp_eq_u32 {sW}, {w}",f"s_cbranch_scc1 Lpk{w}")
e(f"s_mul_i32 {sT0}, {sG}, {32*3072}",f"s_lshl_b32 {sT1}, {sG}, 11",f"s_add_u32 {sT1}, {sT1}, s55")
packpath("Lpk0a",[(f"s_add_u32 {sT3}, {sT0}, {16*ee*3072+p*1024}",vWQ,SWQ) for p in range(3) for ee in range(2)],[f"s_add_u32 {sT3}, {sT1}, {p*32768+ee*1024}" for p in range(3) for ee in range(2)])
e("Lpk1:")
e(f"s_mul_i32 {sT0}, {sJ}, 224")
for q in range(7):
    e(f"v_add_u32 v17, {64*q}, v{vLANE}",f"v_mul_u32_u24 v18, 4682, v17",f"v_lshrrev_b32 v18, 16, v18",f"v_mul_u32_u24 v{52+q}, {3584-224}, v18",f"v_lshl_add_u32 v{52+q}, v17, 4, v{52+q}",f"v_add_u32 v{52+q}, {sT0}, v{52+q}")
e(f"s_mul_i32 {sT3}, {sG}, 114688",f"s_mul_i32 {sT1}, {sG}, 7168",f"s_add_u32 {sT1}, {sT1}, s48",f"s_sub_u32 {sT1}, {sT1}, s49")
for k in range(7): e(f"s_mov_b32 m0, {131072+k*1024}","s_nop 0",f"buffer_load_dwordx4 v{52+k}, {SW1}, {sT3} offen lds")
packpath("Lpk1a",[],[f"s_add_u32 {sT3}, {sT1}, {k*1024}" for k in range(7)])
e("Lpk2:")
e(f"v_lshrrev_b32 v{vWA}, 3, v{vLANE}",f"v_lshlrev_b32 v{vWA}, 10, v{vWA}",f"v_lshlrev_b32 v17, 1, v{vG}",f"v_xor_b32 v17, v17, v{vLANE}",f"v_and_b32 v17, 7, v17",f"v_lshl_add_u32 v{vWA}, v17, 4, v{vWA}",f"s_lshl_b32 {sT0}, {sCB}, 7",f"v_add_u32 v{vWA}, {sT0}, v{vWA}")
e(f"s_lshl_b32 {sT0}, {sG}, 1",f"s_add_u32 {sT0}, {sT0}, {sHB}",f"s_mul_i32 {sT0}, {sT0}, {56*1024}",f"s_lshr_b32 {sT1}, {sG}, 2",f"s_sub_u32 {sT1}, {sT1}, 2",f"s_mul_i32 {sT1}, {sT1}, 57344",f"s_add_u32 {sT1}, {sT1}, s50",
  f"s_and_b32 {sT4}, {sG}, 3",f"s_lshl_b32 {sT2}, {sT4}, 11",f"s_add_u32 {sT2}, {sT2}, {49152-5120}",f"s_add_u32 {sT2}, {sT2}, {sT1}",f"s_mul_i32 {sT4}, {sT4}, 12288",f"s_add_u32 {sT1}, {sT1}, {sT4}",f"s_mul_i32 {sT4}, {sHB}, 7168",f"s_add_u32 {sT1}, {sT1}, {sT4}",
  f"s_cmp_eq_u32 {sHB}, 0",f"s_cselect_b32 {sT2}, {sT1}, {sT2}")
packpath("Lpk2a",[(f"s_add_u32 {sT3}, {sT0}, {k*8192}",vWA,SW2) for k in range(7)],[f"s_add_u32 {sT3}, {sT1 if k<5 else sT2}, {k*1024}" for k in range(7)])
e("Lpk3:")
e(f"v_lshrrev_b32 v{vWA}, 3, v{vLANE}",f"v_lshlrev_b32 v{vWA}, 10, v{vWA}",f"v_lshlrev_b32 v17, 1, v{vG}",f"v_xor_b32 v17, v17, v{vLANE}",f"v_and_b32 v17, 7, v17",f"v_lshl_add_u32 v{vWA}, v17, 4, v{vWA}",f"s_lshl_b32 {sT0}, {sCB}, 7",f"v_add_u32 v{vWA}, {sT0}, v{vWA}")
e(f"s_lshl_b32 {sT0}, {sG}, 1",f"s_add_u32 {sT0}, {sT0}, {sHB}",f"s_lshl_b32 {sT1}, {sT0}, 11",f"s_lshl_b32 {sT0}, {sT0}, 14",f"s_add_u32 {sT1}, {sT1}, s46",f"s_sub_u32 {sT1}, {sT1}, s47")
packpath("Lpk3a",[(f"s_add_u32 {sT3}, {sT0}, {k*8192}",vWA,SWO) for k in range(2)],[f"s_add_u32 {sT3}, {sT1}, {k*1024}" for k in range(2)])
e("Lpk:")
if OPT.get("st5"): stamp()
e(*wq[NF:NE])
if OPT.get("st5"): stamp()
e(f"v_lshlrev_b32 v{vL16}, 4, v{vLANE}",f"v_and_b32 v{vC8}, 3, v{vLANE}",f"v_lshlrev_b32 v{vC8}, 3, v{vC8}")
for i in range(4): e(f"v_mov_b32 v{vONES+i}, 0x3f803f80")
e(f"s_lshl_b32 {sT0}, {sG}, 8",f"s_add_u32 {sT0}, {sT0}, {FL_OFF}",f"v_and_b32 v17, 15, v{vLANE}",f"v_lshl_add_u32 v{vFL}, v17, 3, {sT0}",
  f"s_cmp_eq_u32 {sG}, 0",f"s_cselect_b32 {sT1}, 0, 256",f"v_and_b32 v17, 1, v{vG}",f"v_mul_u32_u24 v17, {sT1}, v17",f"v_sub_u32 v{vFL2}, v{vFL}, v17")
e(f"v_and_b32 v17, 15, v{vLANE}",f"v_lshlrev_b32 v60, 3, v17",f"v_lshl_add_u32 v60, v{vG}, 8, v60")
if OPT.get("st5"): stamp()
e(f"s_cmp_lg_u32 {sW}, 0","s_cbranch_scc1 Lng","v_mov_b32 v19, 0",f"s_mov_b32 {sT2}, 0x40000","Lnp:",f"buffer_load_dwordx2 v[20:21], v19, {SDBG}, 0 offen sc1",f"s_sub_u32 {sT2}, {sT2}, 1","s_cbranch_scc1 Lend","s_waitcnt vmcnt(0)",
  "v_readfirstlane_b32 s44, v20","v_readfirstlane_b32 s45, v21","s_cmp_eq_u32 s45, 0","s_cbranch_scc1 Lnp","Lng:")
e(f"s_waitcnt vmcnt({NE-NF})")
if OPT.get("st5"): stamp()
for u in range(2):
    for i in range(2): e(f"v_permlane16_swap_b32 v{vRES+4*u+i}, v{vRES+4*u+2+i}")
e(f"s_cmp_lg_u32 {sW}, 1","s_cbranch_scc1 Lntr",f"v_mul_u32_u24 v17, 224, v{vR4}",f"v_add_u32 v17, v17, v{vC8}","v_add_u32 v17, 0x20000, v17")
e(*[tr(V(64+4*t+2*ee,2),17,ee*3584+32*t) for t in range(7) for ee in range(2)]); e("Lntr:")
xepi(None,XA_OFF,SA_OFF,0)
e("s_waitcnt lgkmcnt(0)")
for i in range(7):
    if i in (2,6): e(f"s_cmp_le_u32 s97, {i}","s_cbranch_scc1 Lpks")
    e(f"buffer_store_dwordx4 {V(64+4*i,4)}, v{vL16}, {SWS}, s{[2,3,4,5,6,7,98][i]} offen sc1")
e("Lpks:")
if OPT.get("st5"): stamp()
if OPT.get("st5"): stamp()
if OPT.get("st5"): stamp()
ND=OPT.get("nd",10) if wq else 0
if ROT:
    assert NE==0
    e(f"s_and_b32 s83, {sJ}, 3")
    for k in range(4):
        e(f"s_add_u32 {sT0}, s83, {k}",f"s_and_b32 {sT0}, {sT0}, 3",f"s_lshl_b32 s{64+k}, {sT0}, 12",f"s_mul_i32 s{68+k}, {sT0}, 28672",f"s_add_u32 s{68+k}, s{68+k}, s48",
          f"s_mul_i32 s{72+k}, {sT0}, 12288",f"s_add_u32 s{72+k}, s{72+k}, s50",f"s_mul_i32 s{76+k}, {sT0}, 3584")
    for h in range(2): e(f"s_lshl_b32 {sT0}, s83, 1",f"s_add_u32 {sT0}, {sT0}, {sW}",f"s_add_u32 {sT0}, {sT0}, {4*h}",f"s_and_b32 {sT0}, {sT0}, 7",f"s_lshl_b32 {sT0}, {sT0}, 12",f"s_add_u32 s{80+h}, s55, {sT0}",f"s_sub_u32 s{80+h}, s{80+h}, s51")
    e(f"s_add_u32 s83, s83, {sW}","s_and_b32 s83, s83, 3","s_lshl_b32 s82, s83, 14","s_add_u32 s82, s82, s46","s_sub_u32 s82, s82, s47")
e(f"s_mul_i32 s53, {'s83' if ROT else sW}, {4*32*3072}",f"s_lshl_b32 s54, {sW}, 13"); e(*wq[NE:NE+ND]); signal(ND,(),False); e(*wq[NE+ND:])
if OPT.get("st5"): stamp()
e("Llayer:")
XM,XH=0,128; ACC=64; WF=136; CS1,CS3=200,228; CV=200; STV=228
e(f"v_and_b32 v17, 1, v{vG}",f"v_lshl_add_u32 v18, v{vR4}, 6, v{vC8}",f"v_lshl_add_u32 v32, v17, 5, v18",f"v_xor_b32 v33, 32, v32",f"v_add_u32 v34, 0x10000, v32",f"v_add_u32 v35, 0x10000, v33",
  f"s_lshr_b32 {sT0}, {sW}, 1",f"s_add_u32 {sT0}, {sT0}, 1",f"s_lshl_b32 {sT0}, {sT0}, 15",f"s_and_b32 {sT1}, {sW}, 1",f"s_lshl_b32 {sT1}, {sT1}, 5",f"v_xor_b32 v36, {sT1}, v32",f"v_add_u32 v36, {sT0}, v36")
e(f"v_and_b32 v17, 15, v{vLANE}",f"v_lshlrev_b32 v18, 2, v{vG}","v_sub_u32 v17, v17, v18",f"s_mov_b32 {sT0}, 0xf149f2ca",f"v_mov_b32 v19, {sT0}",f"s_or_b32 {sT1}, {sG}, {sW}",f"s_cmp_eq_u32 {sT1}, 0",f"s_cselect_b32 {sT1}, {sT0}, 0")
for i in range(4):
    e(f"v_subrev_u32 v18, {i}, v17","v_and_b32 v37, 0x80000001, v18","v_cmp_eq_u32 vcc, 0, v37",f"v_cndmask_b32_e64 v{40+i}, v19, 0, vcc",
      "v_cmp_eq_u32 vcc, 0x80000000, v37",f"v_cndmask_b32_e64 v{44+i}, v19, 0, vcc",f"v_add_f32 v{48+i}, {sT1}, v{44+i}")
e(f"s_add_u32 {sT1}, {sRT1}, {sLB}",f"s_add_u32 {sT1}, {sT1}, {XA_OFF}",f"v_add_u32 v24, {sT1}, v{vL16}","v_add_u32 v25, 0x4000, v24",
  f"s_lshr_b32 {sT1}, {sRT1}, 4",f"s_add_u32 {sT1}, {sT1}, {sLB}",f"s_add_u32 {sT1}, {sT1}, {SA_OFF}",f"v_add_u32 v27, {sT1}, v60",
  f"s_lshl_b32 {sT0}, {sG}, 17",f"s_add_u32 {sT1}, {sLB}, {XA_OFF-16384}",f"s_add_u32 {sT1}, {sT1}, {sT0}",f"s_lshr_b32 {sT0}, {sT0}, 4",f"s_add_u32 {sT0}, {sT0}, {sLB}",f"s_add_u32 {sT0}, {sT0}, {SA_OFF-1024}",
  f"s_cmp_eq_u32 {sG}, 0",f"s_cselect_b32 {sT1}, 0xffff0000, {sT1}",f"s_cselect_b32 {sT0}, 0xffff0000, {sT0}",f"v_add_u32 v26, {sT1}, v{vL16}",f"v_add_u32 v37, {sT0}, v60")
def p1_reads(s):
    b=WF+28*(s&1)
    return [tr(V(b+4*t+2*ee,2),ad,po+s*2048+ee*1024) for t,(ad,po) in enumerate(((32,0),(33,0),(32,32768),(33,32768),(34,0),(35,0),(36,0))) for ee in range(2)]
XB=79872
e(f"v_lshlrev_b32 v39, 8, v{vR4}",f"v_lshl_add_u32 v39, v{vC8}, 2, v39",f"v_add_u32 v39, {FL_OFF}, v39")
e(f"s_lshl_b32 {sT0}, {sW}, 11",f"s_add_u32 {sT0}, {sT0}, {XB}",f"v_lshl_add_u32 v61, v{vLANE}, 3, {sT0}",f"v_and_b32 v17, 15, v{vLANE}",f"v_lshlrev_b32 v17, 5, v17",f"v_lshl_add_u32 v17, v{vG}, 3, v17",f"v_add_u32 v62, {sT0}, v17",
  f"v_lshl_add_u32 v63, v{vR4}, 5, v{vC8}",f"v_add_u32 v63, {sT0}, v63",
  f"v_add_u32 v17, 9216, v17",f"v_lshlrev_b32 v38, 3, v{vLANE}",f"s_cmp_ge_u32 {sW}, 2","s_cselect_b64 vcc, -1, 0",f"s_and_b32 {sT0}, {sW}, 1",f"s_lshl_b32 {sT0}, {sT0}, 9","v_cndmask_b32 v38, v38, v17, vcc",f"s_add_u32 {sT0}, {sT0}, {XB}",f"v_add_u32 v38, {sT0}, v38")
stamp()
e(f"s_cmp_eq_u32 {sL}, 0","s_cbranch_scc1 Lna1")
for i in range(28): e(f"v_accvgpr_read_b32 v{CV+i}, a{CS1+i}")
if OPT.get("l0p",0):
    poll(vFL2); e("s_branch Lna2","Lna1:",f"v_lshlrev_b32 v18, 8, v{vR4}",f"v_lshl_add_u32 v18, v{vC8}, 2, v18",f"v_add_u32 v18, {FL_OFF}, v18")
    poll(18,4); e(*sum([dma_wq2(k) for k in range(6)],[])); e("Lna2:")
else: e("Lna1:"); poll(vFL2)
stamp()
class Ramp:
    def __init__(s,f,l0,la): s.f,s.n,s.la=f,l0,la
    def step(s,k):
        o=[]
        for _ in range(2):
            if s.n<=k+s.la: o+=s.f(s.n); s.n+=1
        return o
class Q:
    def __init__(s): s.q=[]
    def add(s,tag,ins): s.q.append(tag); return ins
    def wait(s,tag): return len(s.q)-1-max(i for i,t in enumerate(s.q) if t==tag)
def xl(dst,ad,s):
    if ROT: return f"buffer_load_dwordx4 {dst}, v{ad}, {SWS}, s{64+(s>>2)} offen offset:{(s&3)*1024} sc1"
    return (f"s_movk_i32 {sT4}, {(s>>2)*4096}\n" if s>=4 else "")+f"buffer_load_dwordx4 {dst}, v{ad}, {SWS}, {sT4 if s>=4 else 0} offen offset:{(s&3)*1024} sc1"+NT("nta")
def stl(dst,ad,o): return [f"buffer_load_dwordx2 {V(dst+2*k,2)}, v{ad}, {SWS}, 0 offen offset:{o+128*k} sc1" for k in range(2)]
LA1=OPT.get("la1",4); assert LA1<=5 and OPT.get("la3",4)<=5; q=Q()
HL=OPT.get("hl",0)
p1x=lambda s:[q.add(s,xl(A(r,4),ad,s)) for r,ad in ((XM+4*s,24),(XM+64+4*s,25),(XH+4*s,26))[:3-HL]] if s<16 else []
if HL:
    assert OPT.get("nwo",0)==0
    e("s_add_u32 m0, s51, 98304",f"v_add_u32 v39, 98304, v{vL16}")
    for k in range(4): e(f"buffer_load_dwordx4 v26, {SWS}, s51 offen offset:{k*1024} sc1 lds")
e(*p1x(0))
I1=min(LA1,OPT.get("i1",3)); r1=Ramp(p1x,I1,LA1)
for s in range(1,I1): e(*p1x(s))
NWO=OPT.get("nwo",0); wo=dma_wo()
e(f"s_cmp_eq_u32 {sL}, 0","s_cbranch_scc1 Lnwo"); e(*wo[:NWO]); e("Lnwo:")
if HL: e(f"s_waitcnt vmcnt({len(q.q)})","s_barrier"); e(*[f"ds_read_b128 {A(XH+4*k,4)}, v39 offset:{k*1024}" for k in range(16)])
cs_part(lambda s,ee:s*2048+ee*1024,CS1,"Lcp1",lambda:e(f"s_waitcnt vmcnt({len(q.q)})\ns_barrier" if OPT.get("l0p",0) else "","v_add_u32 v52, 0xffff8000, v36",f"s_and_b32 {sT0}, {sW}, 1",f"s_lshl_b32 {sT0}, {sT0}, 5",f"v_xor_b32 v53, {sT0}, v34"))
e(*p1_reads(0))
stv=sum([cap(stats,STV+4*m,STV+4*m+1,17+m) for m in range(3)],[]); stv=[stv[i+20*m] for i in range(20) for m in range(3)]
for s in range(16):
    b=WF+28*(s&1)
    vm=q.wait(s)
    mm=[[mfma(V(ACC+24*m+4*t,4),V(b+4*t,4),A(XM+64*m+4*s,4),V(ACC+24*m+4*t,4) if s else "0") for m in range(2)] for t in range(6)]
    mm.append([mfma(V(ACC+48,4),V(b+24,4),A(XH+4*s,4),V(ACC+48,4) if s else "0")])
    ld=r1.step(s)
    if s==2: ld+=[q.add("st",x) for x in stl(STV,27,0)+stl(STV+4,27,1024)+stl(STV+8,37,0)]
    if s==13 and OPT.get("gf",0): e(f"s_or_b32 {sT0}, {sL}, {sW}",f"s_cmp_lg_u32 {sT0}, 0","s_cbranch_scc1 Lgf",f"buffer_load_dwordx4 v[248:251], v39, {SWS}, 0 offen sc1",f"buffer_load_dwordx4 v[252:255], v39, {SWS}, 0 offen offset:16 sc1","Lgf:")
    if 8<=s: ld=merge(stv[:8],ld); stv=stv[8:]
    pstep(mm,p1_reads(s+1) if s<15 else [],ld,s==0,vm,s in(0,8))
assert not stv
stamp()
e(f"s_cmp_lg_u32 {sL}, 0","s_cbranch_scc1 Lpkb")
poll(39,4,OPT.get("gf",0))
e(*wo[:NWO]); e("s_branch Lpkd","Lpkb:","s_barrier","Lpkd:")
cs_fin(6,CS1,"Lcf1")
PK=120; XB=79872
n0=len(L)
def scale_tile(acc,cs,st,dst):
    e(pkfma(acc,cs,st),pkfma(acc+2,cs+2,st),pkmul(acc,acc,st,1),pkmul(acc+2,acc+2,st,1),f"v_cvt_pk_bf16_f32 v{dst}, v{acc}, v{acc+1}",f"v_cvt_pk_bf16_f32 v{dst+1}, v{acc+2}, v{acc+3}")
scale_tile(ACC+48,CV+24,STV+8,PK+24); e(f"ds_write_b64 v38, {V(PK+24,2)}")
for m in (1,0):
    for t in (2,3,4,5):
        scale_tile(ACC+24*m+4*t,CV+4*t,STV+4*m,PK+12*m+2*t)
        if t>=4: e(f"ds_write_b64 v62, {V(PK+12*m+2*t,2)} offset:{9216+((m+1)*2+t-4)*512}")
        elif m==1: e(f"ds_write_b64 v61, {V(PK+12*m+2*t,2)} offset:{(4+t-2)*512}")
e("s_waitcnt lgkmcnt(0)","s_barrier")
KP=148; VF=152
for h in range(2):
    e(f"ds_read_b64 {V(KP+2*h,2)}, v61 offset:{h*512}")
    for k in range(3): e(tr(V(VF+8*h+2*k,2),63,9216+(k*2+h)*512))
for m in range(2):
    for t in range(2): scale_tile(ACC+24*m+4*t,CV+4*t,STV+4*m,PK+12*m+2*t)
U=[(m,h) for m in range(2) for h in range(2)]
S=lambda u:168+16*u
def mf16(d,a,b,c): return f"v_mfma_f32_16x16x16_bf16 {d}, {a}, {b}, {c}"
for u,(m,h) in enumerate(U): e(mf16(V(S(u)+4,4),V(PK+12*m+4+2*h,2),V(PK+12*m+2*h,2),V(40,4)))
e("s_waitcnt lgkmcnt(0)")
for u,(m,h) in list(enumerate(U))[::-1]: e(mf16(V(S(u),4),V(KP+2*h,2) if m==0 else V(PK+4+2*h,2),V(PK+12*m+2*h,2),V(48 if m==0 else 44,4)))
def steps(f):
    for u in (3,2,1,0): e(*f(S(u),u))
steps(lambda s,u:[f"v_max3_f32 v{s+8}, v{s+4}, v{s+5}, v{s+6}",f"v_max3_f32 v{s+9}, v{s+7}, v{s}, v{s+1}"])
steps(lambda s,u:[f"v_max3_f32 v{s+8}, v{s+8}, v{s+2}, v{s+3}"])
steps(lambda s,u:[f"v_max_f32 v{s+8}, v{s+8}, v{s+9}"])
for sw in (16,32):
    steps(lambda s,u:[f"v_mov_b32 v{s+9}, v{s+8}"])
    steps(lambda s,u:[f"v_permlane{sw}_swap_b32 v{s+8}, v{s+9}"])
    steps(lambda s,u:[f"v_max_f32 v{s+8}, v{s+8}, v{s+9}"])
e(f"v_mov_b32 v20, 0x3eb8aa3b")
steps(lambda s,u:[f"v_mul_f32 v{s+8}, v20, v{s+8}"])
steps(lambda s,u:[f"v_pk_fma_f32 {V(s+2*i,2)}, {V(s+2*i,2)}, v[20:21], {V(s+8,2)} op_sel_hi:[1,0,0] neg_lo:[0,0,1] neg_hi:[0,0,1]" for i in range(4)]+[f"v_exp_f32 v{s+i}, v{s+i}" for i in range(8)])
steps(lambda s,u:[f"v_cvt_pk_bf16_f32 v{s+12+i}, v{s+2*i}, v{s+2*i+1}" for i in range(4)])
steps(lambda s,u:[mfma(V(s,4),V(VF+8*U[u][1]+2*U[u][0],4),V(s+12,4),"0"),mfma(V(s+4,4),V(vONES,4),V(s+12,4),"0")])
steps(lambda s,u:[f"v_rcp_f32 v{s+4}, v{s+4}"])
steps(lambda s,u:[pkmul(s+2*i,s+2*i,s+4,0) for i in range(2)])
steps(lambda s,u:[f"v_cvt_pk_bf16_f32 v{96+4*U[u][0]+2*U[u][1]+i}, v{s+2*i}, v{s+2*i+1}" for i in range(2)])
body=L[n0:]; del L[n0:]; W1E=OPT.get("w1e",7); w1=dma_w1(0)+dma_w1(1)
ib=body.index("s_barrier"); assert ib<0.5*len(body)
h_=int(0.55*len(body)); e(*spread(body[:h_],wo[NWO:],0.0,0.9)); e(*spread(body[h_:],w1[:W1E],0.0,0.8))
e(f"s_lshl_b32 {sT1}, {sJ}, 10",f"s_add_u32 {sT0}, {sRT1}, {sT1}",f"s_add_u32 {sT0}, {sT0}, {sL2}",f"s_add_u32 {sT1}, {sT0}, 0x4000")
e(f"buffer_store_dwordx4 {V(100,4)}, v{vL16}, {SWS}, {sT1} offen sc1",f"buffer_store_dwordx4 {V(96,4)}, v{vL16}, {SWS}, {sT0} offen sc1")
stamp()
w1=w1[W1E:]; N0=min(8,len(w1)); e(*w1[:N0]); signal(N0); e(*w1[N0:]); e(*dma_w1(2))
e(f"s_mov_b32 {sT2}, 98304"); rd128(sT2,32)
e(f"s_add_u32 {sT0}, {sRT2}, {sL2}",f"v_add_u32 v24, {sT0}, v{vL16}")
def wr2(s,t,c=4,o=0): return A(64+16*s+4*t+o,c) if s<8 else V(112+16*(s-8)+4*t+o,c)
e("s_waitcnt vmcnt(13)" if 0 else "")
for s in range(16): e(*[tr(wr2(s,t,2,2*ee),32+t,s*4096+ee*2048) for t in range(4) for ee in range(2)])
poll(vFL)
stamp()
I2=OPT.get("i2",12)
for s in range(I2): e(xl(A(4*s,4),24,s))
for s in range(16):
    P2D=OPT.get("p2d",1); assert I2>=7
    e(f"s_waitcnt vmcnt({min(15,I2+s-1)-s+(max(0,s-9) if P2D else 0)})")
    e(*merge([mfma(V(64+4*t,4),wr2(s,t),A(4*s,4),V(64+4*t,4) if s else "0") for t in range(4)],[xl(A(4*(s+I2),4),24,s+I2)] if s+I2<16 else [dma_w1(3)[s-9]] if P2D and s>=9 else []))
stamp()
xepi(64,X1_OFF,S1_OFF,0)
w20=dma_w2((0,1,2))
if P2D: e(*w20[:8]); signal(8); w20=w20[8:]
else: e(*dma_w1(3)); signal(7)
e(*w20)
rd128('s51',40)
for t in range(4): e(f'v_add_u32 v{44+t}, 0x10000, v{40+t}',f'v_add_u32 v{48+t}, 0x20000, v{40+t}')
e(f"v_mov_b32 v32, v{vL16}",f"v_add_u32 v33, 57344, v32")
e(f"s_add_u32 {sT1}, {sRT1}, {sL2}",f"s_add_u32 {sT1}, {sT1}, {X1_OFF}",f"v_add_u32 v24, {sT1}, v{vL16}","v_add_u32 v25, 0x4000, v24",
  f"s_lshr_b32 {sT1}, {sRT1}, 4",f"s_add_u32 {sT1}, {sT1}, {sL2}",f"s_add_u32 {sT1}, {sT1}, {S1_OFF}",f"v_add_u32 v27, {sT1}, v60")
def p3_reads(s):
    b=WF+28*(s&1)
    return [f"ds_read_b128 {V(b+4*t,4)}, v{32+(s>>3)} offset:{(s&7)*7168+1024*t}" for t in range(7)]
e(f"s_cmp_eq_u32 {sL}, 0","s_cbranch_scc1 Lna3")
for i in range(28): e(f"v_accvgpr_read_b32 v{CV+i}, a{CS3+i}")
e("Lna3:")
poll(vFL)
stamp()
LA3=OPT.get("la3",4); q=Q(); AC=64
p3x=lambda s:[q.add(s,xl(A(64*m+4*s,4),24+m,s)) for m in range(2)] if s<16 else []
e(*p3x(0))
I3=min(LA3,OPT.get("i3",3)); r3=Ramp(p3x,I3,LA3)
for s in range(1,I3): e(*p3x(s))
stv=sum([cap(stats,STV+4*m,STV+4*m+1,17+m)+[f"v_mul_f32 v{STV+4*m+2}, 0xbfb8aa3b, v{STV+4*m+1}",f"v_mul_f32 v{STV+4*m}, v{STV+4*m}, v{STV+4*m+2}"] for m in range(2)],[]); stv=[stv[i+22*m] for i in range(22) for m in range(2)]
PRE=128
def rd4a(b,off): return [tr(A(b+4*t+2*ee,2),40+(4+t if off<131072 else 8+t),(off&65535)+ee*2048) for t in range(4) for ee in range(2)]
cs_part(lambda s,ee:s*7168+ee*3584,CS3,"Lcp3",lambda:e(f"s_lshl_b32 {sT0}, {sW}, 10",f"v_add_u32 v52, {sT0}, v32",f"s_min_u32 {sT0}, {sT0}, 2048",f"s_add_u32 {sT0}, {sT0}, 4096",f"v_add_u32 v53, {sT0}, v32","v_add_u32 v54, 0x10000, v52","v_add_u32 v55, 0x10000, v53"),1)
for k in range(3): e(*rd4a(PRE+16*k,SLOT[k]*16384))
e(*p3_reads(0))
w2m={11:dma_w2((3,)),12:dma_w2((11,)),13:dma_w2((12,))}
for s in range(16):
    b=WF+28*(s&1)
    vm=q.wait(s)
    mm=[[mfma(V(AC+28*m+4*t,4),V(b+4*t,4),A(64*m+4*s,4),V(AC+28*m+4*t,4) if s else "0") for m in range(2)] for t in range(7)]
    ld=r3.step(s)
    if s in w2m: ld+=[q.add("w",x) for x in w2m[s]]
    if s==2: ld+=[q.add("st",x) for x in stl(STV,27,0)+stl(STV+4,27,1024)]
    if 9<=s: ld=merge(stv[:7],ld); stv=stv[7:]
    pstep(mm,p3_reads(s+1) if s<15 else [],ld,s==0,vm,s in(0,8),1)
stamp()
assert not stv
e("s_waitcnt vmcnt(8)"); e(*rd4a(PRE+48,SLOT[3]*16384))
e("s_barrier")
cs_fin(7,CS3,"Lcf3")
n0=len(L)
e(f"s_lshr_b32 {sT0}, {sRT1}, 14",f"s_mul_i32 {sT0}, {sT0}, 57344",f"s_mul_i32 {sT1}, {sJ}, 3584",f"s_add_u32 {sT0}, {sT0}, {sT1}",f"s_add_u32 {sT0}, {sT0}, {sL2}",f"s_add_u32 {sT0}, {sT0}, {H_OFF}",f"v_lshlrev_b32 v34, 3, v{vLANE}","v_mov_b32 v20, 0xbfb8aa3b")
for m in range(2):
    st=STV+4*m
    for t0 in (0,2,4,6):
        n=8 if t0<6 else 4; a=AC+28*m+4*t0; c=CV+4*t0; tm=160; pk=120+16*m+2*t0
        for i in range(0,n,2): e(pkmul(a+i,a+i,st+2,0))
        for i in range(0,n,2): e(pkfma(a+i,c+i,st))
        for i in range(n): e(f"v_exp_f32 v{tm+i}, v{a+i}")
        for i in range(0,n,2): e(f"v_pk_fma_f32 {V(tm+i,2)}, {V(tm+i,2)}, v[20:21], v[20:21] op_sel_hi:[1,0,0]")
        for i in range(n): e(f"v_rcp_f32 v{tm+i}, v{tm+i}")
        for i in range(0,n,2): e(f"v_pk_mul_f32 {V(a+i,2)}, {V(a+i,2)}, {V(tm+i,2)}")
        for i in range(n//2): e(f"v_cvt_pk_bf16_f32 v{pk+i}, v{a+2*i}, v{a+2*i+1}")
        if t0<6: e(f"buffer_store_dwordx4 {V(pk,4)}, v{vL16}, {SWS}, {sT0} offen offset:{t0*512} sc1")
        else: e(f"buffer_store_dwordx2 {V(pk,2)}, v34, {SWS}, {sT0} offen offset:3072 sc1")
    if m==0: e(f"s_add_u32 {sT0}, {sT0}, 57344")
w2=dma_w2(range(4,11))+["s_waitcnt lgkmcnt(0)\n"+dma_w2((13,))[0]]+dma_w2((13,))[1:]; N2=OPT.get("n2",12); N3=OPT.get("n3",8)
body=L[n0:]; del L[n0:]; e(*spread(body,w2[:N2],0.0,0.8))
stamp()
e(*w2[N2:N2+N3]); signal(N3)
e(*w2[N2+N3:])
def rd4v(b,off): return [tr(V(b+4*t+2*ee,2),40+(t if off<65536 else 4+t if off<131072 else 8+t),(off&65535)+ee*2048) for t in range(4) for ee in range(2)]
e(f"s_lshr_b32 {sT0}, {sRT2}, 14",f"s_sub_u32 {sT0}, {sT0}, {sW}",f"s_mul_i32 {sT0}, {sT0}, 57344",f"s_mul_i32 {sT1}, {sW}, 14336",f"s_add_u32 {sT0}, {sT0}, {sT1}",f"s_add_u32 {sT0}, {sT0}, {sL2}",f"s_add_u32 {sT0}, {sT0}, {H_OFF}",
  f"v_add_u32 v36, {sT0}, v{vL16}",f"v_lshl_add_u32 v37, v{vLANE}, 3, {sT0}")
for i in range(1,4): e(f"s_add_u32 {sT0}, {sW}, {i}",f"s_and_b32 {sT0}, {sT0}, 3",f"s_mul_i32 {sT0}, {sT0}, 12288",f"s_add_u32 {sT0}, {sT0}, {98304+(i-1)*4096}",f"v_add_u32 v{16+i}, {sT0}, v{vL16}")
e(f"s_mul_i32 {sT0}, {sW}, 12288",f"s_add_u32 {sT0}, {sT0}, 98304",f"v_add_u32 v20, {sT0}, v{vL16}")
poll(vFL)
stamp()
def af(s,i,c=4,o=0):
    return A(((s%8)*4+i)*4+o,c)
q=Q(); LA4=OPT.get("la4",4)
def p4x(s):
    o=[]
    for i in range(4 if s<14 else 0):
        if s<12:
            jj,u=divmod(s,3); o.append(q.add(s,f"s_add_u32 {sT4}, s{[56,99,100,101][i]}, {f's{76+jj}' if ROT else jj*3584}\nbuffer_load_dwordx4 {af(s,i)}, v36, {SWS}, {sT4} offen offset:{u*1024} sc1"+NT("nth")))
        else:
            for ee in range(2):
                jj=(s-12)*2+ee; o.append(q.add(s,f"s_add_u32 {sT4}, s{[56,99,100,101][i]}, {jj*3584}\nbuffer_load_dwordx2 {af(s,i,2,2*ee)}, v37, {SWS}, {sT4} offen offset:3072 sc1"+NT("nth")))
    return o
I4=min(LA4,OPT.get("i4",3)); r4=Ramp(p4x,I4,LA4)
for s in range(I4): e(*p4x(s))
WB=lambda s: 232 if s&1 else 216
WR=lambda s,t: A(PRE+16*s+4*t,4) if s<4 else V(WB(s)+4*t,4)
for s in range(14):
    vm=q.wait(s)
    mm=[[mfma(V(64+16*i+4*t,4),WR(s,t),af(s,i),V(64+16*i+4*t,4) if s else "0") for i in range(4)] for t in range(4)]
    ld=r4.step(s); P4Q=OPT.get("p4q",0)
    if 13-P4Q<=s<13: ld+=[q.add("w",x) for x in dma_wq2(s-13+P4Q)]
    if s==13:
        mi=lambda i:[mm[t][i] for t in range(4)]; wr=lambda i:[f"ds_write_b128 v{16+i}, {V(64+16*i+4*t,4)} offset:{t*1024}" for t in range(4)]
        e(f"s_waitcnt vmcnt({vm}) lgkmcnt(0)","s_barrier"); e(*(mi(1)+mi(2)+merge(mi(3),wr(1))+merge(mi(0),wr(2))+wr(3))); continue
    pstep(mm,rd4v(WB(s+1),SLOT[s+1]*16384) if 3<=s<13 else [],ld,s<4,vm,s in(0,7))
stamp()
n0=len(L)
e("s_waitcnt lgkmcnt(0)","s_barrier")
for k in range(12): e(f"ds_read_b128 {V(128+4*k,4)}, v20 offset:{k*1024}")
e("s_waitcnt lgkmcnt(8)")
for i in range(8): e(f"v_pk_add_f32 {V(64+2*i,2)}, {V(64+2*i,2)}, {V(128+2*i,2)}")
e("s_waitcnt lgkmcnt(0)")
for i in range(8): e(f"v_pk_add_f32 {V(144+2*i,2)}, {V(144+2*i,2)}, {V(160+2*i,2)}")
for i in range(8): e(f"v_pk_add_f32 {V(128+2*i,2)}, {V(64+2*i,2)}, {V(144+2*i,2)}")
red=L[n0:]; del L[n0:]
e(f"s_cmp_lg_u32 {sL}, 0","s_cbranch_scc1 Lout")
wq=sum([dma_wq2(k) for k in range(P4Q,6)],[]); N1=OPT.get("n1",4)
e(*spread(red,wq[:N1],0.0,0.4))
xepi(128,XA_OFF,SA_OFF,16*MB)
stamp()
e(*wq[N1:N1+10]); signal(10); e(*wq[N1+10:])
e(f"s_mov_b32 {sL}, 1",f"s_mov_b32 {sLB}, {16*MB}","s_branch Llayer")
e("Lout:")
e(*red)
xepi(128,0,0,0,False)
for u in range(2):
    for i in range(2): e(f"v_permlane16_swap_b32 v{vRES+4*u+i}, v{vRES+4*u+2+i}")
for u in range(2): e(f"buffer_store_dwordx4 {V(vRES+4*u,4)}, v59, {SOUT}, s52 offen offset:{u*64}"+(" sc1" if OPT.get("osc") else ""))
e("Lfin:","s_waitcnt vmcnt(0)")
if OPT["stamp"]:
    stamp()
    e(f"s_cmp_lg_u32 {sW}, 0","s_cbranch_scc1 Lend",f"s_lshl_b32 {sT0}, {sB}, 7",f"s_add_u32 {sT0}, {sT0}, {ST_OFF}","s_mov_b64 exec, 1","v_mov_b32 v18, 0")
    for i in range(30): e(f"v_mov_b32 v17, s{64+i}",f"buffer_store_dword v17, v18, {SWS}, {sT0} offen offset:{4*i}")
if OPT.get("dbgst"):
    e(f"s_cmp_lg_u32 {sB}, {OPT['dbgst']}","s_cbranch_scc1 Lend")
    for i in list(range(1,13))+[16,28]: e(f"s_sub_u32 s94, s{64+i}, s64","v_mov_b32 v17, s94",f"buffer_store_dword v17, v18, {SDBG}, 0 offen offset:{4*(min(i,13)+(i==28))+4}")
e("Lend:","s_endpgm")
K=NAME+"_kernel"
hdr=f"""; @launch grid=(256,1,1) block=(256,1,1) lds=163840
.amdgcn_target "amdgcn-amd-amdhsa--gfx950"
.text
.globl {K}
.p2align 8
.type {K},@function
{K}:
"""
ftr=f"""
.section .rodata,"a"
.p2align 6
.amdhsa_kernel {K}
  .amdhsa_next_free_vgpr 512
  .amdhsa_next_free_sgpr 102
  .amdhsa_accum_offset 256
  .amdhsa_group_segment_fixed_size 0
  .amdhsa_kernarg_size 72
  .amdhsa_user_sgpr_count 2
  .amdhsa_user_sgpr_kernarg_segment_ptr 1
  .amdhsa_system_sgpr_workgroup_id_x 1
.end_amdhsa_kernel
"""
open(sys.argv[1],"w").write(hdr+"\n".join(fix(L))+ftr)
print("stamps",nst[0],"lines",len(L))
```

```python
import sys
from asmlib import fix
NAME="interleave_layers__sliding_local_dilated__dense_activation_silu__prompt"
OPT=dict(stamp=0, stop=99, nodot=0)
for a in sys.argv[2:]:
    k,v=a.split("="); OPT[k]=int(v)
L=[]
def e(*x):
    for t in x:
        for u in t.split("\n"):
            u=u.strip()
            if u: L.append(u)
def V(n,c=1): return f"v{n}" if c==1 else f"v[{n}:{n+c-1}]"
def A(n,c=1): return f"a{n}" if c==1 else f"a[{n}:{n+c-1}]"
def merge(main,*fill):
    out=[]; n=len(main); pos=[0]*len(fill)
    for i,m in enumerate(main):
        out.append(m)
        for k,f in enumerate(fill):
            tgt=(len(f)*(i+1)+n-1)//n
            while pos[k]<min(tgt,len(f)): out.append(f[pos[k]]); pos[k]+=1
    return out
MB=1<<20
O_OFF,X1_OFF,H_OFF,XA_OFF,SA_OFF,S1_OFF,FL_OFF,ST_OFF=0,2*MB,4*MB,12*MB,14*MB,14*MB+262144,40*MB,41*MB
SX,SWQ,SWO,SW1,SW2,SWS,SOUT,SDBG="s[4:7]","s[8:11]","s[12:15]","s[16:19]","s[20:23]","s[24:27]","s[28:31]","s[32:35]"
sG,sJ,sW,sL="s36","s37","s38","s39"
sKS=40
sES,sT0,sT1,sT2,sLB,sPH,sHB,sCB="s56","s57","s58","s59","s60","s61","s62","s63"
sB="s96"; sONE="s97"; sTO="s98"
vLANE,vL16,vRES,vX1,vWQ,vFL,vFL2=0,1,2,10,11,12,13
vR4,vG,vC8=14,15,16
vONES=28
nst=[0]; skip=0
def stamp(x=False):
    global skip
    skip+=1
    if OPT.get('st4') and skip in (2,7,8,9,14): return
    if OPT["stamp"]:
        i=nst[0]; nst[0]+=1
        if i>=15: return
        e("s_memtime s[94:95]" if OPT.get("clk") else "s_memrealtime s[94:95]","s_waitcnt lgkmcnt(0)",f"s_cmp_eq_u32 {sL}, 0",f"s_cselect_b32 s{64+i}, s94, s{64+i}",f"s_cselect_b32 s{79+i}, s{79+i}, s94")
def signal(n=0,rb=(),st=True):
    lab=f"Lsig{len(L)}"
    e(f"s_add_u32 {sPH}, {sPH}, 1",f"s_or_b32 {sT0}, s44, {sPH}",f"v_mov_b32 v22, {sT0}","v_mov_b32 v23, s45",f"s_lshl_b32 {sT1}, {sJ}, 3",f"s_cmp_lg_u32 {sW}, 0",f"s_waitcnt vmcnt({n})")
    if OPT.get("st3") and st: stamp(); e(f"s_cmp_lg_u32 {sW}, 0")
    e("s_barrier",f"s_cbranch_scc1 {lab}","s_mov_b64 exec, 1",f"buffer_store_dwordx2 v[22:23], v{vFL}, {SWS}, {sT1} offen sc1","s_mov_b64 exec, -1",f"{lab}:")
def poll(vaddr,n=1,pre=False):
    lab=f"Lpoll{len(L)}"
    e(f"s_cmp_lg_u32 {sW}, 0",f"s_cbranch_scc1 {lab}x",f"s_mov_b32 {sTO}, 0x40000",f"s_or_b32 {sT0}, s44, {sPH}",f"s_sub_u32 {sT1}, 16, {sPH}",f"s_branch {lab}p" if pre else "",f"{lab}:")
    if n==4: e(f"buffer_load_dwordx4 v[248:251], v{vaddr}, {SWS}, 0 offen sc1",f"buffer_load_dwordx4 v[252:255], v{vaddr}, {SWS}, 0 offen offset:16 sc1")
    else: e(f"buffer_load_dwordx2 v[248:249], v{vaddr}, {SWS}, 0 offen sc1")
    e(f"{lab}p:",f"s_sub_u32 {sTO}, {sTO}, 1","s_cbranch_scc1 Lend","s_waitcnt vmcnt(0)")
    for k in range(n):
        e(f"v_subrev_u32 v{248+2*k}, {sT0}, v{248+2*k}",f"v_xor_b32 v{249+2*k}, s45, v{249+2*k}")
        if k: e(f"v_max_u32 v248, v248, v{248+2*k}",f"v_or_b32 v249, v249, v{249+2*k}")
    e(f"v_cmp_gt_u32 vcc, {sT1}, v248","v_cmp_eq_u32 s[2:3], 0, v249","s_and_b64 vcc, vcc, s[2:3]","s_cmp_eq_u64 vcc, exec",f"s_cbranch_scc1 {lab}x",f"s_sleep {OPT.get('slp',6)}" if OPT.get('slp',6) else "",f"s_branch {lab}",f"{lab}x:","s_waitcnt vmcnt(0) lgkmcnt(0)","s_barrier")
def dma(vo,srd,so): e(f"buffer_load_dwordx4 v{vo}, {srd}, {so} offen lds")
def xsum(r,t,op="v_add_f32"):
    e(f"v_mov_b32 v{t}, v{r}",f"v_permlane16_swap_b32 v{r}, v{t}",f"{op} v{r}, v{r}, v{t}",f"v_mov_b32 v{t}, v{r}",f"v_permlane32_swap_b32 v{r}, v{t}",f"{op} v{r}, v{r}, v{t}")
def stats(su,sq,t):
    e(f"v_add_f32 v{su}, v{su}, v{su+2}",f"v_add_f32 v{sq}, v{sq}, v{sq+2}")
    xsum(su,t); xsum(sq,t)
    e(f"v_mul_f32 v{su}, 0x3b000000, v{su}",f"v_mul_f32 v{sq}, 0x3b000000, v{sq}",f"v_fma_f32 v{sq}, -v{su}, v{su}, v{sq}",f"v_max_f32 v{sq}, 0, v{sq}",
      f"v_add_f32 v{sq}, 0x3727c5ac, v{sq}",f"v_rsq_f32 v{sq}, v{sq}")
def mfma(d,a,b,c): return f"v_mfma_f32_16x16x32_bf16 {d}, {a}, {b}, {c}"
def tr(d,ad,off): return f"ds_read_b64_tr_b16 {d}, v{ad} offset:{off}"

ROT=OPT.get("rot",0 if OPT["stamp"] else 1); assert not(ROT and OPT["stamp"])
NT=lambda k:" nt" if OPT.get(k,0) else ""
sL2="0" if OPT.get("reuse",0) else sLB
sT3,sT4="s40","s41"
sRT2,sRT1="s42","s43"
vWA=10
def D(m0,so,vo,srd): return f"{m0}\n{so}\nbuffer_load_dwordx4 v{vo}, {srd}, {sT3} offen lds"
def dma_wq():
    return [D(f"s_add_u32 m0, s54, {p*32768+s*2048+ee*1024}",f"s_add_u32 {sT3}, s53, {(32*s+16*ee)*3072+p*1024}",vWQ,SWQ) for s in range(4) for ee in range(2) for p in range(3)]
PQ,PO,P1W,P2W=44*MB,46*MB,47*MB,50*MB
def PD(ldsb,lds,srcb,src,n):
    o=[]
    for i in range(n):
        pre=f"s_add_u32 m0, {ldsb}, {lds+i*1024}\ns_add_u32 {sT3}, {srcb}, {src+i*1024}\n" if i%4==0 else ""
        o.append(pre+f"buffer_load_dwordx4 v{vL16}, {SWS}, {sT3} offen offset:{(i%4)*1024} sc1 lds")
    return o
def dma_wo(): return PD("s47",98304,"s82" if ROT else "s46",0,16)
def dma_w1(k): return PD("s49",k*28672,f"s{68+k}",0,7) if ROT else PD("s49",k*28672,"s48",k*28672,7)
SLOT={0:7,1:8,2:9,3:7,11:8,12:9,13:7,**{4+k:k for k in range(7)}}
def dma_w2(steps): return [x for st in steps for x in (PD("s51",SLOT[st]*16384,f"s{72+st//3}",(st%3)*4096,4) if ROT and st<12 else PD("s51",SLOT[st]*16384,"s50",st*4096,4))]
def dma_wq2(k): return PD("s51",k*16384,f"s{80+(k&1)}",(k>>1)*32768,4) if ROT else PD("s51",k*16384,"s55",k*16384,4)
def rd128(base,v0):
    e(f"v_lshrrev_b32 v17, 1, v{vR4}",f"v_and_b32 v17, 3, v17",f"v_lshl_add_u32 v18, v{vR4}, 7, v{vC8}",f"v_add_u32 v18, {base}, v18")
    for t in range(4): e(f"v_xor_b32 v{v0+t}, {t}, v17",f"v_lshl_add_u32 v{v0+t}, v{v0+t}, 5, v18")
def cap(f,*a):
    n=len(L); f(*a); r=L[n:]; del L[n:]; return r
def spread(main,fill,lo=0.0,hi=1.0):
    m2=[]
    for x in main:
        if m2 and m2[-1].split("\n")[-1].startswith("s_cmp"): m2[-1]+="\n"+x
        else: m2.append(x)
    main=m2
    n=len(main); a=int(n*lo); b=max(a+1,int(n*hi)); return main[:a]+merge(main[a:b],fill)+main[b:]
def pkfma(a,c,mean): return f"v_pk_fma_f32 {V(a,2)}, {V(mean,2)}, {V(c,2)}, {V(a,2)} op_sel_hi:[0,1,1] neg_lo:[1,0,0] neg_hi:[1,0,0]"
def pkmul(d,a,pair,hi): return f"v_pk_mul_f32 {V(d,2)}, {V(a,2)}, {V(pair,2)} "+("op_sel:[0,1] op_sel_hi:[1,1]" if hi else "op_sel_hi:[1,0]")
def xepi(acc,xoff,soff,nxt,st=True):
    for k in range(8):
        r=vRES+k
        e(f"v_lshlrev_b32 v{96+2*k}, 16, v{r}",f"v_and_b32 v{97+2*k}, 0xffff0000, v{r}")
        if acc is not None: e(f"v_pk_add_f32 {V(96+2*k,2)}, {V(96+2*k,2)}, {V(acc+2*k,2)}",f"v_cvt_pk_bf16_f32 v{r}, v{96+2*k}, v{97+2*k}")
    if not st: return
    e(f"s_lshl_b32 {sT1}, {sCB}, 11",f"s_add_u32 {sT1}, {sT1}, {sRT2}",f"s_add_u32 {sT1}, {sT1}, {sL2}",f"s_add_u32 s53, {sT1}, {xoff+nxt}")
    for u in range(2): e(f"buffer_store_dwordx4 {V(vRES+4*u,4)}, v{vL16}, {SWS}, s53 offen offset:{u*1024} sc1")
    e(f"v_pk_mul_f32 v[20:21], v[96:97], v[96:97]")
    for k in range(1,8): e(f"v_pk_fma_f32 v[20:21], {V(96+2*k,2)}, {V(96+2*k,2)}, v[20:21]",f"v_pk_add_f32 v[96:97], v[96:97], {V(96+2*k,2)}")
    e("v_add_f32 v21, v20, v21","v_add_f32 v20, v96, v97")
    xsum(20,17); xsum(21,18)
    e(f"s_lshr_b32 {sT1}, {sRT2}, 4",f"s_lshl_b32 {sT0}, {sCB}, 7",f"s_add_u32 {sT1}, {sT1}, {sT0}",f"s_add_u32 {sT1}, {sT1}, {sL2}",f"s_add_u32 s54, {sT1}, {soff+nxt}",f"v_lshlrev_b32 v17, 3, v{vLANE}",
      "s_mov_b64 exec, 0xffff",f"buffer_store_dwordx2 v[20:21], v17, {SWS}, s54 offen sc1","s_mov_b64 exec, -1")
XRB=[f"buffer_load_dwordx4 v[248:251], v{vL16}, {SWS}, s53 offen offset:{u*1024} sc1" for u in range(2)]+[f"v_and_b32 v17, 0x70, v{vL16}",f"buffer_load_dwordx4 v[248:251], v17, {SWS}, s54 offen sc1"]
def cs_part(off,cs,lab,pre,R=2):
    e(f"s_cmp_lg_u32 {sL}, 0",f"s_cbranch_scc1 {lab}"); pre()
    rd=lambda s:[tr(V(WF+8*(s%6)+4*t+2*ee,2),52+t+2*(off(s,ee)>>16),off(s,ee)&65535) for t in range(2) for ee in range(2)]
    if R==1: rd=lambda s:[f"ds_read_b128 {V(WF+8*(s%6)+4*t,4)}, v{52+t+2*(off(s,0)>>16)} offset:{off(s,0)&65535}" for t in range(2)]
    for s in range(3): e(*rd(s))
    for s in range(16):
        e(f"s_waitcnt lgkmcnt({2*R*min(2,15-s)})")
        e(*[mfma(A(cs+4*t,4),V(WF+8*(s%6)+4*t,4),V(vONES,4),A(cs+4*t,4) if s else "0") for t in range(2)])
        if s+3<16: e(*rd(s+3))
    e(f"{lab}:")
def cs_fin(nt,cs,lab):
    e(f"s_cmp_lg_u32 {sL}, 0",f"s_cbranch_scc1 {lab}")
    e(f"v_lshlrev_b32 v17, 4, v{vG}",f"s_lshl_b32 {sT0}, {sW}, 6",f"v_add_u32 v19, {sT0}, v17","s_mov_b32 exec_lo, 0x10001","s_mov_b32 exec_hi, 0x10001")
    e(f"ds_write_b128 v19, {A(cs,4)}",f"ds_write_b128 v19, {A(cs+4,4)} offset:256","s_mov_b64 exec, -1","s_waitcnt lgkmcnt(0)","s_barrier")
    for R in (V,A):
        for t in range(7): e(f"ds_read_b128 {R((CV if R is V else cs)+4*t,4)}, v{19 if t>=nt else 17} offset:{128 if t>=nt else t*64}")
    e("s_waitcnt lgkmcnt(0)")
    if nt==7: e("s_barrier")
    e(f"{lab}:")
def pstep(groups,nxt,ld,first,vm,later,R=2):
    nt=len(groups); out=[]; k=0
    for t,g in enumerate(groups):
        if first: w=f"s_waitcnt vmcnt({vm}) lgkmcnt(0)" if t==0 else None
        else:
            n=R*(nt-1-t)+(R*t if nxt else 0)
            if OPT.get("hw",1): n=max(0,n-R) if t+1<nt else n
            w=(f"s_waitcnt vmcnt({vm}) lgkmcnt({n})" if t==0 else f"s_waitcnt lgkmcnt({n})" if not(OPT.get("hw",1) and t&1) else None)
        if w: out.append(w)
        if t==0 and later and OPT.get("st4"): out+=cap(stamp,True); out.append("s_nop 0")
        r=nxt[R*t:R*t+R] if nxt else []
        tgt=(len(ld)*(t+1)+nt-1)//nt; l=ld[k:tgt]; k=max(k,tgt)
        out+=merge(g,r,l)
    e(*out)
e(f"s_cmp_ge_u32 s2, 256","s_cbranch_scc1 Lend",f"s_mov_b32 {sB}, s2")
e("s_load_dwordx2 s[4:5], s[0:1], 0","s_load_dwordx2 s[8:9], s[0:1], 8","s_load_dwordx2 s[12:13], s[0:1], 16","s_load_dwordx2 s[16:17], s[0:1], 32","s_load_dwordx2 s[20:21], s[0:1], 40",
  "s_load_dwordx2 s[24:25], s[0:1], 64","s_load_dwordx2 s[28:29], s[0:1], 48","s_load_dwordx2 s[32:33], s[0:1], 56")
for b,n in ((4,2*MB),(8,512*3072),(12,512*1024),(16,512*3584),(20,1792*1024),(24,64*MB),(28,2*MB),(32,256)):
    e(f"s_mov_b32 s{b+2}, {n}",f"s_mov_b32 s{b+3}, 0x20000")
e(f"v_lshrrev_b32 v17, 6, v0",f"v_and_b32 v{vLANE}, 63, v0",f"v_readfirstlane_b32 {sW}, v17",
  *([f"s_and_b32 {sT0}, s2, 7",f"s_lshr_b32 {sT1}, s2, 3",f"s_and_b32 {sJ}, {sT1}, 15",f"s_lshr_b32 {sT1}, {sT1}, 4",f"s_lshl_b32 {sG}, {sT0}, 1",f"s_add_u32 {sG}, {sG}, {sT1}",
  f"s_lshr_b32 {sHB}, {sJ}, 3",f"s_and_b32 {sCB}, {sJ}, 7"] if OPT.get("x2",3)==0 else
  [f"s_and_b32 {sG}, s2, 6",f"s_lshl_b32 {sG}, {sG}, 1",f"s_lshr_b32 {sT1}, s2, 6",f"s_add_u32 {sG}, {sG}, {sT1}",f"s_bfe_u32 {sJ}, s2, 0x30003",f"s_and_b32 {sT0}, s2, 1",f"s_lshl_b32 {sT1}, {sT0}, 3",f"s_add_u32 {sJ}, {sJ}, {sT1}",
  ]+([f"s_bfe_u32 {sHB}, {sJ}, 0x10002",f"s_and_b32 {sCB}, {sJ}, 3",f"s_lshl_b32 {sT0}, {sT0}, 2",f"s_add_u32 {sCB}, {sCB}, {sT0}"] if OPT.get("x2",3)==1 else [f"s_lshr_b32 {sHB}, {sJ}, 3",f"s_and_b32 {sCB}, {sJ}, 7"]) if OPT.get("x2",3)&1 else
  [f"s_and_b32 {sG}, s2, 4",f"s_lshl_b32 {sG}, {sG}, 1",f"s_lshr_b32 {sT1}, s2, 5",f"s_add_u32 {sG}, {sG}, {sT1}",f"s_bfe_u32 {sJ}, s2, 0x20003",f"s_and_b32 {sT0}, s2, 3",f"s_lshl_b32 {sT1}, {sT0}, 2",f"s_add_u32 {sJ}, {sJ}, {sT1}",
  f"s_bfe_u32 {sHB}, {sJ}, 0x10001",f"s_and_b32 {sCB}, {sJ}, 1",f"s_lshl_b32 {sT0}, {sT0}, 1",f"s_add_u32 {sCB}, {sCB}, {sT0}"]),
  f"s_lshl_b32 {sT0}, {sG}, 3",f"s_lshl_b32 {sT1}, {sHB}, 2",f"s_add_u32 {sT1}, {sT1}, {sT0}",f"s_add_u32 {sT1}, {sT1}, {sW}",f"s_lshl_b32 {sRT2}, {sT1}, 14",f"s_lshl_b32 {sT1}, {sW}, 1",f"s_add_u32 {sT1}, {sT1}, {sT0}",f"s_lshl_b32 {sRT1}, {sT1}, 14")
e(f"v_lshrrev_b32 v{vG}, 4, v{vLANE}",f"v_and_b32 v17, 15, v{vLANE}",f"v_lshlrev_b32 v59, 10, v17",f"v_and_b32 v18, 1, v{vG}",f"v_lshl_add_u32 v59, v18, 5, v59",f"v_lshrrev_b32 v18, 1, v{vG}",f"v_lshl_add_u32 v59, v18, 4, v59",
  f"s_lshl_b32 {sT1}, {sCB}, 7",f"s_add_u32 s52, {sRT2}, {sT1}","s_waitcnt lgkmcnt(0)")
for u in range(2): e(f"buffer_load_dwordx4 {V(vRES+4*u,4)}, v59, {SX}, s52 offen offset:{u*64}")
e(f"s_or_b32 {sT0}, s2, {sW}",f"s_cmp_lg_u32 {sT0}, 0","s_cbranch_scc1 Lnn","s_memrealtime s[44:45]","v_mov_b32 v19, 0","s_waitcnt lgkmcnt(0)","s_lshl_b64 s[44:45], s[44:45], 4","s_or_b32 s45, s45, 0x40000000","v_mov_b32 v20, s44","v_mov_b32 v21, s45",
  "s_mov_b64 exec, 1",f"buffer_store_dwordx2 v[20:21], v19, {SDBG}, 0 offen sc1","s_mov_b64 exec, -1","Lnn:")
e(f"v_lshrrev_b32 v{vR4}, 2, v{vLANE}",f"v_mul_u32_u24 v{vWQ}, 3072, v{vR4}",f"v_and_b32 v17, 1, v{vG}",f"v_lshlrev_b32 v17, 1, v17",f"v_xor_b32 v17, v17, v{vLANE}",f"v_and_b32 v17, 3, v17",f"v_lshl_add_u32 v{vWQ}, v17, 4, v{vWQ}",
  f"s_lshl_b32 {sT0}, {sJ}, 6",f"v_add_u32 v{vWQ}, {sT0}, v{vWQ}")
e(f"s_mov_b32 {sL}, 0")
e("s_mov_b64 s[44:45], 0")
if OPT["stamp"]:
    for i in range(30): e(f"s_mov_b32 s{64+i}, 0")
stamp()
wq=dma_wq(); NE=OPT.get("ne",0)
if OPT.get("l0p",0): wq=[]; NE=0
e(f"s_mul_i32 s53, {sW}, {4*32*3072}",f"s_lshl_b32 s54, {sW}, 13"); NF=min(NE,OPT.get("nf",0)); e(*wq[:NF])
if OPT.get("pf",0):
    e(f"s_lshr_b32 {sT0}, {sB}, 3",f"s_lshl_b32 {sT0}, {sT0}, 2",f"s_add_u32 {sT0}, {sT0}, {sW}",f"s_mul_i32 {sT0}, {sT0}, 12288",f"v_lshlrev_b32 v17, 4, v{vLANE}")
    for k in range(12):
        e(f"buffer_load_dwordx4 {V(112+4*k,4)}, v17, {SWQ}, {sT0} offen offset:{(k&3)*1024}")
        if k&3==3: e(f"s_addk_i32 {sT0}, 0x1000")
e(f"s_mov_b32 {sLB}, 0",f"s_mov_b32 {sPH}, 0",f"s_lshl_b32 s47, {sW}, 14",f"s_lshl_b32 s46, {sCB}, 16","s_add_u32 s46, s46, s47",f"s_add_u32 s46, s46, {PO}",f"s_mul_i32 s49, {sW}, 7168",f"s_mul_i32 s48, {sJ}, 114688","s_add_u32 s48, s48, s49",f"s_add_u32 s48, s48, {P1W}",
  f"s_lshl_b32 s50, {sCB}, 2",f"s_add_u32 s50, s50, {sW}","s_mul_i32 s50, s50, 57344",f"s_add_u32 s50, s50, {P2W}",f"s_lshl_b32 s51, {sW}, 12",f"s_mul_i32 s55, {sJ}, 98304","s_add_u32 s55, s55, s51",f"s_add_u32 s55, s55, {PQ}")
for i in range(4): e(f"s_add_u32 {sT0}, {sW}, {i}",f"s_and_b32 {sT0}, {sT0}, 3",f"s_mul_i32 s{[56,99,100,101][i]}, {sT0}, 57344")
def packpath(lab,loads,stores):
    e(f"{lab}:")
    for i,(pre,vo,srd) in enumerate(loads): e(pre,f"buffer_load_dwordx4 {V(64+4*i,4)}, v{vo}, {srd}, {sT3} offen")
    for i,pre in enumerate(stores): e(pre.replace(f"u32 {sT3},",f"u32 s{[2,3,4,5,6,7,98][i]},"))
    e(f"s_mov_b32 s97, {len(stores)}","s_branch Lpk")
for w in (1,2,3): e(f"s_cmp_eq_u32 {sW}, {w}",f"s_cbranch_scc1 Lpk{w}")
e(f"s_mul_i32 {sT0}, {sG}, {32*3072}",f"s_lshl_b32 {sT1}, {sG}, 11",f"s_add_u32 {sT1}, {sT1}, s55")
packpath("Lpk0a",[(f"s_add_u32 {sT3}, {sT0}, {16*ee*3072+p*1024}",vWQ,SWQ) for p in range(3) for ee in range(2)],[f"s_add_u32 {sT3}, {sT1}, {p*32768+ee*1024}" for p in range(3) for ee in range(2)])
e("Lpk1:")
e(f"s_mul_i32 {sT0}, {sJ}, 224")
for q in range(7):
    e(f"v_add_u32 v17, {64*q}, v{vLANE}",f"v_mul_u32_u24 v18, 4682, v17",f"v_lshrrev_b32 v18, 16, v18",f"v_mul_u32_u24 v{52+q}, {3584-224}, v18",f"v_lshl_add_u32 v{52+q}, v17, 4, v{52+q}",f"v_add_u32 v{52+q}, {sT0}, v{52+q}")
e(f"s_mul_i32 {sT3}, {sG}, 114688",f"s_mul_i32 {sT1}, {sG}, 7168",f"s_add_u32 {sT1}, {sT1}, s48",f"s_sub_u32 {sT1}, {sT1}, s49")
for k in range(7): e(f"s_mov_b32 m0, {131072+k*1024}","s_nop 0",f"buffer_load_dwordx4 v{52+k}, {SW1}, {sT3} offen lds")
packpath("Lpk1a",[],[f"s_add_u32 {sT3}, {sT1}, {k*1024}" for k in range(7)])
e("Lpk2:")
e(f"v_lshrrev_b32 v{vWA}, 3, v{vLANE}",f"v_lshlrev_b32 v{vWA}, 10, v{vWA}",f"v_lshlrev_b32 v17, 1, v{vG}",f"v_xor_b32 v17, v17, v{vLANE}",f"v_and_b32 v17, 7, v17",f"v_lshl_add_u32 v{vWA}, v17, 4, v{vWA}",f"s_lshl_b32 {sT0}, {sCB}, 7",f"v_add_u32 v{vWA}, {sT0}, v{vWA}")
e(f"s_lshl_b32 {sT0}, {sG}, 1",f"s_add_u32 {sT0}, {sT0}, {sHB}",f"s_mul_i32 {sT0}, {sT0}, {56*1024}",f"s_lshr_b32 {sT1}, {sG}, 2",f"s_sub_u32 {sT1}, {sT1}, 2",f"s_mul_i32 {sT1}, {sT1}, 57344",f"s_add_u32 {sT1}, {sT1}, s50",
  f"s_and_b32 {sT4}, {sG}, 3",f"s_lshl_b32 {sT2}, {sT4}, 11",f"s_add_u32 {sT2}, {sT2}, {49152-5120}",f"s_add_u32 {sT2}, {sT2}, {sT1}",f"s_mul_i32 {sT4}, {sT4}, 12288",f"s_add_u32 {sT1}, {sT1}, {sT4}",f"s_mul_i32 {sT4}, {sHB}, 7168",f"s_add_u32 {sT1}, {sT1}, {sT4}",
  f"s_cmp_eq_u32 {sHB}, 0",f"s_cselect_b32 {sT2}, {sT1}, {sT2}")
packpath("Lpk2a",[(f"s_add_u32 {sT3}, {sT0}, {k*8192}",vWA,SW2) for k in range(7)],[f"s_add_u32 {sT3}, {sT1 if k<5 else sT2}, {k*1024}" for k in range(7)])
e("Lpk3:")
e(f"v_lshrrev_b32 v{vWA}, 3, v{vLANE}",f"v_lshlrev_b32 v{vWA}, 10, v{vWA}",f"v_lshlrev_b32 v17, 1, v{vG}",f"v_xor_b32 v17, v17, v{vLANE}",f"v_and_b32 v17, 7, v17",f"v_lshl_add_u32 v{vWA}, v17, 4, v{vWA}",f"s_lshl_b32 {sT0}, {sCB}, 7",f"v_add_u32 v{vWA}, {sT0}, v{vWA}")
e(f"s_lshl_b32 {sT0}, {sG}, 1",f"s_add_u32 {sT0}, {sT0}, {sHB}",f"s_lshl_b32 {sT1}, {sT0}, 11",f"s_lshl_b32 {sT0}, {sT0}, 14",f"s_add_u32 {sT1}, {sT1}, s46",f"s_sub_u32 {sT1}, {sT1}, s47")
packpath("Lpk3a",[(f"s_add_u32 {sT3}, {sT0}, {k*8192}",vWA,SWO) for k in range(2)],[f"s_add_u32 {sT3}, {sT1}, {k*1024}" for k in range(2)])
e("Lpk:")
if OPT.get("st5"): stamp()
e(*wq[NF:NE])
if OPT.get("st5"): stamp()
e(f"v_lshlrev_b32 v{vL16}, 4, v{vLANE}",f"v_and_b32 v{vC8}, 3, v{vLANE}",f"v_lshlrev_b32 v{vC8}, 3, v{vC8}")
for i in range(4): e(f"v_mov_b32 v{vONES+i}, 0x3f803f80")
e(f"s_lshl_b32 {sT0}, {sG}, 8",f"s_add_u32 {sT0}, {sT0}, {FL_OFF}",f"v_and_b32 v17, 15, v{vLANE}",f"v_lshl_add_u32 v{vFL}, v17, 3, {sT0}",
  f"s_cmp_eq_u32 {sG}, 0",f"s_cselect_b32 {sT1}, 0, 256",f"v_and_b32 v17, 1, v{vG}",f"v_mul_u32_u24 v17, {sT1}, v17",f"v_sub_u32 v{vFL2}, v{vFL}, v17")
e(f"v_and_b32 v17, 15, v{vLANE}",f"v_lshlrev_b32 v60, 3, v17",f"v_lshl_add_u32 v60, v{vG}, 8, v60")
if OPT.get("st5"): stamp()
e(f"s_cmp_lg_u32 {sW}, 0","s_cbranch_scc1 Lng","v_mov_b32 v19, 0",f"s_mov_b32 {sT2}, 0x40000","Lnp:",f"buffer_load_dwordx2 v[20:21], v19, {SDBG}, 0 offen sc1",f"s_sub_u32 {sT2}, {sT2}, 1","s_cbranch_scc1 Lend","s_waitcnt vmcnt(0)",
  "v_readfirstlane_b32 s44, v20","v_readfirstlane_b32 s45, v21","s_cmp_eq_u32 s45, 0","s_cbranch_scc1 Lnp","Lng:")
e(f"s_waitcnt vmcnt({NE-NF})")
if OPT.get("st5"): stamp()
for u in range(2):
    for i in range(2): e(f"v_permlane16_swap_b32 v{vRES+4*u+i}, v{vRES+4*u+2+i}")
e(f"s_cmp_lg_u32 {sW}, 1","s_cbranch_scc1 Lntr",f"v_mul_u32_u24 v17, 224, v{vR4}",f"v_add_u32 v17, v17, v{vC8}","v_add_u32 v17, 0x20000, v17")
e(*[tr(V(64+4*t+2*ee,2),17,ee*3584+32*t) for t in range(7) for ee in range(2)]); e("Lntr:")
xepi(None,XA_OFF,SA_OFF,0)
e("s_waitcnt lgkmcnt(0)")
for i in range(7):
    if i in (2,6): e(f"s_cmp_le_u32 s97, {i}","s_cbranch_scc1 Lpks")
    e(f"buffer_store_dwordx4 {V(64+4*i,4)}, v{vL16}, {SWS}, s{[2,3,4,5,6,7,98][i]} offen sc1")
e("Lpks:")
if OPT.get("st5"): stamp()
if OPT.get("st5"): stamp()
if OPT.get("st5"): stamp()
ND=OPT.get("nd",10) if wq else 0
if ROT:
    assert NE==0
    e(f"s_and_b32 s83, {sJ}, 3")
    for k in range(4):
        e(f"s_add_u32 {sT0}, s83, {k}",f"s_and_b32 {sT0}, {sT0}, 3",f"s_lshl_b32 s{64+k}, {sT0}, 12",f"s_mul_i32 s{68+k}, {sT0}, 28672",f"s_add_u32 s{68+k}, s{68+k}, s48",
          f"s_mul_i32 s{72+k}, {sT0}, 12288",f"s_add_u32 s{72+k}, s{72+k}, s50",f"s_mul_i32 s{76+k}, {sT0}, 3584")
    for h in range(2): e(f"s_lshl_b32 {sT0}, s83, 1",f"s_add_u32 {sT0}, {sT0}, {sW}",f"s_add_u32 {sT0}, {sT0}, {4*h}",f"s_and_b32 {sT0}, {sT0}, 7",f"s_lshl_b32 {sT0}, {sT0}, 12",f"s_add_u32 s{80+h}, s55, {sT0}",f"s_sub_u32 s{80+h}, s{80+h}, s51")
    e(f"s_add_u32 s83, s83, {sW}","s_and_b32 s83, s83, 3","s_lshl_b32 s82, s83, 14","s_add_u32 s82, s82, s46","s_sub_u32 s82, s82, s47")
e(f"s_mul_i32 s53, {'s83' if ROT else sW}, {4*32*3072}",f"s_lshl_b32 s54, {sW}, 13"); e(*wq[NE:NE+ND]); signal(ND,(),False); e(*wq[NE+ND:])
if OPT.get("st5"): stamp()
e("Llayer:")
XM,XH=0,128; ACC=64; WF=136; CS1,CS3=200,228; CV=200; STV=228
e(f"v_and_b32 v17, 1, v{vG}",f"v_lshl_add_u32 v18, v{vR4}, 6, v{vC8}",f"v_lshl_add_u32 v32, v17, 5, v18",f"v_xor_b32 v33, 32, v32",f"v_add_u32 v34, 0x10000, v32",f"v_add_u32 v35, 0x10000, v33",
  f"s_lshr_b32 {sT0}, {sW}, 1",f"s_add_u32 {sT0}, {sT0}, 1",f"s_lshl_b32 {sT0}, {sT0}, 15",f"s_and_b32 {sT1}, {sW}, 1",f"s_lshl_b32 {sT1}, {sT1}, 5",f"v_xor_b32 v36, {sT1}, v32",f"v_add_u32 v36, {sT0}, v36")
e(f"v_and_b32 v17, 15, v{vLANE}",f"v_lshlrev_b32 v18, 2, v{vG}","v_sub_u32 v17, v17, v18",f"s_mov_b32 {sT0}, 0xf149f2ca",f"v_mov_b32 v19, {sT0}",f"s_or_b32 {sT1}, {sG}, {sW}",f"s_cmp_eq_u32 {sT1}, 0",f"s_cselect_b32 {sT1}, {sT0}, 0")
for i in range(4):
    e(f"v_subrev_u32 v18, {i}, v17","v_and_b32 v37, 0x80000001, v18","v_cmp_eq_u32 vcc, 0, v37",f"v_cndmask_b32_e64 v{40+i}, v19, 0, vcc",
      "v_cmp_eq_u32 vcc, 0x80000000, v37",f"v_cndmask_b32_e64 v{44+i}, v19, 0, vcc",f"v_add_f32 v{48+i}, {sT1}, v{44+i}")
e(f"s_add_u32 {sT1}, {sRT1}, {sLB}",f"s_add_u32 {sT1}, {sT1}, {XA_OFF}",f"v_add_u32 v24, {sT1}, v{vL16}","v_add_u32 v25, 0x4000, v24",
  f"s_lshr_b32 {sT1}, {sRT1}, 4",f"s_add_u32 {sT1}, {sT1}, {sLB}",f"s_add_u32 {sT1}, {sT1}, {SA_OFF}",f"v_add_u32 v27, {sT1}, v60",
  f"s_lshl_b32 {sT0}, {sG}, 17",f"s_add_u32 {sT1}, {sLB}, {XA_OFF-16384}",f"s_add_u32 {sT1}, {sT1}, {sT0}",f"s_lshr_b32 {sT0}, {sT0}, 4",f"s_add_u32 {sT0}, {sT0}, {sLB}",f"s_add_u32 {sT0}, {sT0}, {SA_OFF-1024}",
  f"s_cmp_eq_u32 {sG}, 0",f"s_cselect_b32 {sT1}, 0xffff0000, {sT1}",f"s_cselect_b32 {sT0}, 0xffff0000, {sT0}",f"v_add_u32 v26, {sT1}, v{vL16}",f"v_add_u32 v37, {sT0}, v60")
def p1_reads(s):
    b=WF+28*(s&1)
    return [tr(V(b+4*t+2*ee,2),ad,po+s*2048+ee*1024) for t,(ad,po) in enumerate(((32,0),(33,0),(32,32768),(33,32768),(34,0),(35,0),(36,0))) for ee in range(2)]
XB=79872
e(f"v_lshlrev_b32 v39, 8, v{vR4}",f"v_lshl_add_u32 v39, v{vC8}, 2, v39",f"v_add_u32 v39, {FL_OFF}, v39")
e(f"s_lshl_b32 {sT0}, {sW}, 11",f"s_add_u32 {sT0}, {sT0}, {XB}",f"v_lshl_add_u32 v61, v{vLANE}, 3, {sT0}",f"v_and_b32 v17, 15, v{vLANE}",f"v_lshlrev_b32 v17, 5, v17",f"v_lshl_add_u32 v17, v{vG}, 3, v17",f"v_add_u32 v62, {sT0}, v17",
  f"v_lshl_add_u32 v63, v{vR4}, 5, v{vC8}",f"v_add_u32 v63, {sT0}, v63",
  f"v_add_u32 v17, 9216, v17",f"v_lshlrev_b32 v38, 3, v{vLANE}",f"s_cmp_ge_u32 {sW}, 2","s_cselect_b64 vcc, -1, 0",f"s_and_b32 {sT0}, {sW}, 1",f"s_lshl_b32 {sT0}, {sT0}, 9","v_cndmask_b32 v38, v38, v17, vcc",f"s_add_u32 {sT0}, {sT0}, {XB}",f"v_add_u32 v38, {sT0}, v38")
stamp()
e(f"s_cmp_eq_u32 {sL}, 0","s_cbranch_scc1 Lna1")
for i in range(28): e(f"v_accvgpr_read_b32 v{CV+i}, a{CS1+i}")
if OPT.get("l0p",0):
    poll(vFL2); e("s_branch Lna2","Lna1:",f"v_lshlrev_b32 v18, 8, v{vR4}",f"v_lshl_add_u32 v18, v{vC8}, 2, v18",f"v_add_u32 v18, {FL_OFF}, v18")
    poll(18,4); e(*sum([dma_wq2(k) for k in range(6)],[])); e("Lna2:")
else: e("Lna1:"); poll(vFL2)
stamp()
class Ramp:
    def __init__(s,f,l0,la): s.f,s.n,s.la=f,l0,la
    def step(s,k):
        o=[]
        for _ in range(2):
            if s.n<=k+s.la: o+=s.f(s.n); s.n+=1
        return o
class Q:
    def __init__(s): s.q=[]
    def add(s,tag,ins): s.q.append(tag); return ins
    def wait(s,tag): return len(s.q)-1-max(i for i,t in enumerate(s.q) if t==tag)
def xl(dst,ad,s):
    if ROT: return f"buffer_load_dwordx4 {dst}, v{ad}, {SWS}, s{64+(s>>2)} offen offset:{(s&3)*1024} sc1"
    return (f"s_movk_i32 {sT4}, {(s>>2)*4096}\n" if s>=4 else "")+f"buffer_load_dwordx4 {dst}, v{ad}, {SWS}, {sT4 if s>=4 else 0} offen offset:{(s&3)*1024} sc1"+NT("nta")
def stl(dst,ad,o): return [f"buffer_load_dwordx2 {V(dst+2*k,2)}, v{ad}, {SWS}, 0 offen offset:{o+128*k} sc1" for k in range(2)]
LA1=OPT.get("la1",4); assert LA1<=5 and OPT.get("la3",4)<=5; q=Q()
HL=OPT.get("hl",0)
p1x=lambda s:[q.add(s,xl(A(r,4),ad,s)) for r,ad in ((XM+4*s,24),(XM+64+4*s,25),(XH+4*s,26))[:3-HL]] if s<16 else []
if HL:
    assert OPT.get("nwo",0)==0
    e("s_add_u32 m0, s51, 98304",f"v_add_u32 v39, 98304, v{vL16}")
    for k in range(4): e(f"buffer_load_dwordx4 v26, {SWS}, s51 offen offset:{k*1024} sc1 lds")
e(*p1x(0))
I1=min(LA1,OPT.get("i1",3)); r1=Ramp(p1x,I1,LA1)
for s in range(1,I1): e(*p1x(s))
NWO=OPT.get("nwo",0); wo=dma_wo()
e(f"s_cmp_eq_u32 {sL}, 0","s_cbranch_scc1 Lnwo"); e(*wo[:NWO]); e("Lnwo:")
if HL: e(f"s_waitcnt vmcnt({len(q.q)})","s_barrier"); e(*[f"ds_read_b128 {A(XH+4*k,4)}, v39 offset:{k*1024}" for k in range(16)])
cs_part(lambda s,ee:s*2048+ee*1024,CS1,"Lcp1",lambda:e(f"s_waitcnt vmcnt({len(q.q)})\ns_barrier" if OPT.get("l0p",0) else "","v_add_u32 v52, 0xffff8000, v36",f"s_and_b32 {sT0}, {sW}, 1",f"s_lshl_b32 {sT0}, {sT0}, 5",f"v_xor_b32 v53, {sT0}, v34"))
e(*p1_reads(0))
stv=sum([cap(stats,STV+4*m,STV+4*m+1,17+m) for m in range(3)],[]); stv=[stv[i+20*m] for i in range(20) for m in range(3)]
for s in range(16):
    b=WF+28*(s&1)
    vm=q.wait(s)
    mm=[[mfma(V(ACC+24*m+4*t,4),V(b+4*t,4),A(XM+64*m+4*s,4),V(ACC+24*m+4*t,4) if s else "0") for m in range(2)] for t in range(6)]
    mm.append([mfma(V(ACC+48,4),V(b+24,4),A(XH+4*s,4),V(ACC+48,4) if s else "0")])
    ld=r1.step(s)
    if s==2: ld+=[q.add("st",x) for x in stl(STV,27,0)+stl(STV+4,27,1024)+stl(STV+8,37,0)]
    if s==13 and OPT.get("gf",0): e(f"s_or_b32 {sT0}, {sL}, {sW}",f"s_cmp_lg_u32 {sT0}, 0","s_cbranch_scc1 Lgf",f"buffer_load_dwordx4 v[248:251], v39, {SWS}, 0 offen sc1",f"buffer_load_dwordx4 v[252:255], v39, {SWS}, 0 offen offset:16 sc1","Lgf:")
    if 8<=s: ld=merge(stv[:8],ld); stv=stv[8:]
    pstep(mm,p1_reads(s+1) if s<15 else [],ld,s==0,vm,s in(0,8))
assert not stv
stamp()
e(f"s_cmp_lg_u32 {sL}, 0","s_cbranch_scc1 Lpkb")
poll(39,4,OPT.get("gf",0))
e(*wo[:NWO]); e("s_branch Lpkd","Lpkb:","s_barrier","Lpkd:")
cs_fin(6,CS1,"Lcf1")
PK=120; XB=79872
n0=len(L)
def scale_tile(acc,cs,st,dst):
    e(pkfma(acc,cs,st),pkfma(acc+2,cs+2,st),pkmul(acc,acc,st,1),pkmul(acc+2,acc+2,st,1),f"v_cvt_pk_bf16_f32 v{dst}, v{acc}, v{acc+1}",f"v_cvt_pk_bf16_f32 v{dst+1}, v{acc+2}, v{acc+3}")
scale_tile(ACC+48,CV+24,STV+8,PK+24); e(f"ds_write_b64 v38, {V(PK+24,2)}")
for m in (1,0):
    for t in (2,3,4,5):
        scale_tile(ACC+24*m+4*t,CV+4*t,STV+4*m,PK+12*m+2*t)
        if t>=4: e(f"ds_write_b64 v62, {V(PK+12*m+2*t,2)} offset:{9216+((m+1)*2+t-4)*512}")
        elif m==1: e(f"ds_write_b64 v61, {V(PK+12*m+2*t,2)} offset:{(4+t-2)*512}")
e("s_waitcnt lgkmcnt(0)","s_barrier")
KP=148; VF=152
for h in range(2):
    e(f"ds_read_b64 {V(KP+2*h,2)}, v61 offset:{h*512}")
    for k in range(3): e(tr(V(VF+8*h+2*k,2),63,9216+(k*2+h)*512))
for m in range(2):
    for t in range(2): scale_tile(ACC+24*m+4*t,CV+4*t,STV+4*m,PK+12*m+2*t)
U=[(m,h) for m in range(2) for h in range(2)]
S=lambda u:168+16*u
def mf16(d,a,b,c): return f"v_mfma_f32_16x16x16_bf16 {d}, {a}, {b}, {c}"
for u,(m,h) in enumerate(U): e(mf16(V(S(u)+4,4),V(PK+12*m+4+2*h,2),V(PK+12*m+2*h,2),V(40,4)))
e("s_waitcnt lgkmcnt(0)")
for u,(m,h) in list(enumerate(U))[::-1]: e(mf16(V(S(u),4),V(KP+2*h,2) if m==0 else V(PK+4+2*h,2),V(PK+12*m+2*h,2),V(48 if m==0 else 44,4)))
def steps(f):
    for u in (3,2,1,0): e(*f(S(u),u))
steps(lambda s,u:[f"v_max3_f32 v{s+8}, v{s+4}, v{s+5}, v{s+6}",f"v_max3_f32 v{s+9}, v{s+7}, v{s}, v{s+1}"])
steps(lambda s,u:[f"v_max3_f32 v{s+8}, v{s+8}, v{s+2}, v{s+3}"])
steps(lambda s,u:[f"v_max_f32 v{s+8}, v{s+8}, v{s+9}"])
for sw in (16,32):
    steps(lambda s,u:[f"v_mov_b32 v{s+9}, v{s+8}"])
    steps(lambda s,u:[f"v_permlane{sw}_swap_b32 v{s+8}, v{s+9}"])
    steps(lambda s,u:[f"v_max_f32 v{s+8}, v{s+8}, v{s+9}"])
e(f"v_mov_b32 v20, 0x3eb8aa3b")
steps(lambda s,u:[f"v_mul_f32 v{s+8}, v20, v{s+8}"])
steps(lambda s,u:[f"v_pk_fma_f32 {V(s+2*i,2)}, {V(s+2*i,2)}, v[20:21], {V(s+8,2)} op_sel_hi:[1,0,0] neg_lo:[0,0,1] neg_hi:[0,0,1]" for i in range(4)]+[f"v_exp_f32 v{s+i}, v{s+i}" for i in range(8)])
steps(lambda s,u:[f"v_cvt_pk_bf16_f32 v{s+12+i}, v{s+2*i}, v{s+2*i+1}" for i in range(4)])
steps(lambda s,u:[mfma(V(s,4),V(VF+8*U[u][1]+2*U[u][0],4),V(s+12,4),"0"),mfma(V(s+4,4),V(vONES,4),V(s+12,4),"0")])
steps(lambda s,u:[f"v_rcp_f32 v{s+4}, v{s+4}"])
steps(lambda s,u:[pkmul(s+2*i,s+2*i,s+4,0) for i in range(2)])
steps(lambda s,u:[f"v_cvt_pk_bf16_f32 v{96+4*U[u][0]+2*U[u][1]+i}, v{s+2*i}, v{s+2*i+1}" for i in range(2)])
body=L[n0:]; del L[n0:]; W1E=OPT.get("w1e",7); w1=dma_w1(0)+dma_w1(1)
ib=body.index("s_barrier"); assert ib<0.5*len(body)
h_=int(0.55*len(body)); e(*spread(body[:h_],wo[NWO:],0.0,0.9)); e(*spread(body[h_:],w1[:W1E],0.0,0.8))
e(f"s_lshl_b32 {sT1}, {sJ}, 10",f"s_add_u32 {sT0}, {sRT1}, {sT1}",f"s_add_u32 {sT0}, {sT0}, {sL2}",f"s_add_u32 {sT1}, {sT0}, 0x4000")
e(f"buffer_store_dwordx4 {V(100,4)}, v{vL16}, {SWS}, {sT1} offen sc1",f"buffer_store_dwordx4 {V(96,4)}, v{vL16}, {SWS}, {sT0} offen sc1")
stamp()
w1=w1[W1E:]; N0=min(8,len(w1)); e(*w1[:N0]); signal(N0); e(*w1[N0:]); e(*dma_w1(2))
e(f"s_mov_b32 {sT2}, 98304"); rd128(sT2,32)
e(f"s_add_u32 {sT0}, {sRT2}, {sL2}",f"v_add_u32 v24, {sT0}, v{vL16}")
def wr2(s,t,c=4,o=0): return A(64+16*s+4*t+o,c) if s<8 else V(112+16*(s-8)+4*t+o,c)
e("s_waitcnt vmcnt(13)" if 0 else "")
PP=OPT.get("pp",0)
for s in range(16):
    if PP and s==PP: e(f"s_cmp_lg_u32 {sW}, 0","s_cbranch_scc1 Lpp",f"buffer_load_dwordx2 v[248:249], v{vFL}, {SWS}, 0 offen sc1","Lpp:")
    e(*[tr(wr2(s,t,2,2*ee),32+t,s*4096+ee*2048) for t in range(4) for ee in range(2)])
poll(vFL,1,bool(PP))
stamp()
I2=OPT.get("i2",12)
for s in range(I2): e(xl(A(4*s,4),24,s))
for s in range(16):
    P2D=OPT.get("p2d",1); assert I2>=7
    e(f"s_waitcnt vmcnt({min(15,I2+s-1)-s+(max(0,s-9) if P2D else 0)})")
    e(*merge([mfma(V(64+4*t,4),wr2(s,t),A(4*s,4),V(64+4*t,4) if s else "0") for t in range(4)],[xl(A(4*(s+I2),4),24,s+I2)] if s+I2<16 else [dma_w1(3)[s-9]] if P2D and s>=9 else []))
stamp()
xepi(64,X1_OFF,S1_OFF,0)
w20=dma_w2((0,1,2))
if P2D: e(*w20[:8]); signal(8); w20=w20[8:]
else: e(*dma_w1(3)); signal(7)
e(*w20)
rd128('s51',40)
for t in range(4): e(f'v_add_u32 v{44+t}, 0x10000, v{40+t}',f'v_add_u32 v{48+t}, 0x20000, v{40+t}')
e(f"v_mov_b32 v32, v{vL16}",f"v_add_u32 v33, 57344, v32")
e(f"s_add_u32 {sT1}, {sRT1}, {sL2}",f"s_add_u32 {sT1}, {sT1}, {X1_OFF}",f"v_add_u32 v24, {sT1}, v{vL16}","v_add_u32 v25, 0x4000, v24",
  f"s_lshr_b32 {sT1}, {sRT1}, 4",f"s_add_u32 {sT1}, {sT1}, {sL2}",f"s_add_u32 {sT1}, {sT1}, {S1_OFF}",f"v_add_u32 v27, {sT1}, v60")
def p3_reads(s):
    b=WF+28*(s&1)
    return [f"ds_read_b128 {V(b+4*t,4)}, v{32+(s>>3)} offset:{(s&7)*7168+1024*t}" for t in range(7)]
e(f"s_cmp_eq_u32 {sL}, 0","s_cbranch_scc1 Lna3")
for i in range(28): e(f"v_accvgpr_read_b32 v{CV+i}, a{CS3+i}")
e("Lna3:")
poll(vFL)
stamp()
LA3=OPT.get("la3",4); q=Q(); AC=64
p3x=lambda s:[q.add(s,xl(A(64*m+4*s,4),24+m,s)) for m in range(2)] if s<16 else []
e(*p3x(0))
I3=min(LA3,OPT.get("i3",3)); r3=Ramp(p3x,I3,LA3)
for s in range(1,I3): e(*p3x(s))
stv=sum([cap(stats,STV+4*m,STV+4*m+1,17+m)+[f"v_mul_f32 v{STV+4*m+2}, 0xbfb8aa3b, v{STV+4*m+1}",f"v_mul_f32 v{STV+4*m}, v{STV+4*m}, v{STV+4*m+2}"] for m in range(2)],[]); stv=[stv[i+22*m] for i in range(22) for m in range(2)]
PRE=128
def rd4a(b,off): return [tr(A(b+4*t+2*ee,2),40+(4+t if off<131072 else 8+t),(off&65535)+ee*2048) for t in range(4) for ee in range(2)]
cs_part(lambda s,ee:s*7168+ee*3584,CS3,"Lcp3",lambda:e(f"s_lshl_b32 {sT0}, {sW}, 10",f"v_add_u32 v52, {sT0}, v32",f"s_min_u32 {sT0}, {sT0}, 2048",f"s_add_u32 {sT0}, {sT0}, 4096",f"v_add_u32 v53, {sT0}, v32","v_add_u32 v54, 0x10000, v52","v_add_u32 v55, 0x10000, v53"),1)
for k in range(3): e(*rd4a(PRE+16*k,SLOT[k]*16384))
e(*p3_reads(0))
w2m={11:dma_w2((3,)),12:dma_w2((11,)),13:dma_w2((12,))}
for s in range(16):
    b=WF+28*(s&1)
    vm=q.wait(s)
    mm=[[mfma(V(AC+28*m+4*t,4),V(b+4*t,4),A(64*m+4*s,4),V(AC+28*m+4*t,4) if s else "0") for m in range(2)] for t in range(7)]
    ld=r3.step(s)
    if s in w2m: ld+=[q.add("w",x) for x in w2m[s]]
    if s==2: ld+=[q.add("st",x) for x in stl(STV,27,0)+stl(STV+4,27,1024)]
    if 9<=s: ld=merge(stv[:7],ld); stv=stv[7:]
    pstep(mm,p3_reads(s+1) if s<15 else [],ld,s==0,vm,s in(0,8),1)
stamp()
assert not stv
e("s_waitcnt vmcnt(8)"); e(*rd4a(PRE+48,SLOT[3]*16384))
e("s_barrier")
cs_fin(7,CS3,"Lcf3")
n0=len(L)
e(f"s_lshr_b32 {sT0}, {sRT1}, 14",f"s_mul_i32 {sT0}, {sT0}, 57344",f"s_mul_i32 {sT1}, {sJ}, 3584",f"s_add_u32 {sT0}, {sT0}, {sT1}",f"s_add_u32 {sT0}, {sT0}, {sL2}",f"s_add_u32 {sT0}, {sT0}, {H_OFF}",f"v_lshlrev_b32 v34, 3, v{vLANE}","v_mov_b32 v20, 0xbfb8aa3b")
for m in range(2):
    st=STV+4*m
    for t0 in (0,2,4,6):
        n=8 if t0<6 else 4; a=AC+28*m+4*t0; c=CV+4*t0; tm=160; pk=120+16*m+2*t0
        for i in range(0,n,2): e(pkmul(a+i,a+i,st+2,0))
        for i in range(0,n,2): e(pkfma(a+i,c+i,st))
        for i in range(n): e(f"v_exp_f32 v{tm+i}, v{a+i}")
        for i in range(0,n,2): e(f"v_pk_fma_f32 {V(tm+i,2)}, {V(tm+i,2)}, v[20:21], v[20:21] op_sel_hi:[1,0,0]")
        for i in range(n): e(f"v_rcp_f32 v{tm+i}, v{tm+i}")
        for i in range(0,n,2): e(f"v_pk_mul_f32 {V(a+i,2)}, {V(a+i,2)}, {V(tm+i,2)}")
        for i in range(n//2): e(f"v_cvt_pk_bf16_f32 v{pk+i}, v{a+2*i}, v{a+2*i+1}")
        if t0<6: e(f"buffer_store_dwordx4 {V(pk,4)}, v{vL16}, {SWS}, {sT0} offen offset:{t0*512} sc1")
        else: e(f"buffer_store_dwordx2 {V(pk,2)}, v34, {SWS}, {sT0} offen offset:3072 sc1")
    if m==0: e(f"s_add_u32 {sT0}, {sT0}, 57344")
w2=dma_w2(range(4,11))+["s_waitcnt lgkmcnt(0)\n"+dma_w2((13,))[0]]+dma_w2((13,))[1:]; N2=OPT.get("n2",12); N3=OPT.get("n3",8)
body=L[n0:]; del L[n0:]; e(*spread(body,w2[:N2],0.0,0.8))
stamp()
e(*w2[N2:N2+N3]); signal(N3)
e(*w2[N2+N3:])
def rd4v(b,off): return [tr(V(b+4*t+2*ee,2),40+(t if off<65536 else 4+t if off<131072 else 8+t),(off&65535)+ee*2048) for t in range(4) for ee in range(2)]
e(f"s_lshr_b32 {sT0}, {sRT2}, 14",f"s_sub_u32 {sT0}, {sT0}, {sW}",f"s_mul_i32 {sT0}, {sT0}, 57344",f"s_mul_i32 {sT1}, {sW}, 14336",f"s_add_u32 {sT0}, {sT0}, {sT1}",f"s_add_u32 {sT0}, {sT0}, {sL2}",f"s_add_u32 {sT0}, {sT0}, {H_OFF}",
  f"v_add_u32 v36, {sT0}, v{vL16}",f"v_lshl_add_u32 v37, v{vLANE}, 3, {sT0}")
for i in range(1,4): e(f"s_add_u32 {sT0}, {sW}, {i}",f"s_and_b32 {sT0}, {sT0}, 3",f"s_mul_i32 {sT0}, {sT0}, 12288",f"s_add_u32 {sT0}, {sT0}, {98304+(i-1)*4096}",f"v_add_u32 v{16+i}, {sT0}, v{vL16}")
e(f"s_mul_i32 {sT0}, {sW}, 12288",f"s_add_u32 {sT0}, {sT0}, 98304",f"v_add_u32 v20, {sT0}, v{vL16}")
poll(vFL)
stamp()
def af(s,i,c=4,o=0):
    return A(((s%8)*4+i)*4+o,c)
q=Q(); LA4=OPT.get("la4",4)
def p4x(s):
    o=[]
    for i in range(4 if s<14 else 0):
        if s<12:
            jj,u=divmod(s,3); o.append(q.add(s,f"s_add_u32 {sT4}, s{[56,99,100,101][i]}, {f's{76+jj}' if ROT else jj*3584}\nbuffer_load_dwordx4 {af(s,i)}, v36, {SWS}, {sT4} offen offset:{u*1024} sc1"+NT("nth")))
        else:
            for ee in range(2):
                jj=(s-12)*2+ee; o.append(q.add(s,f"s_add_u32 {sT4}, s{[56,99,100,101][i]}, {jj*3584}\nbuffer_load_dwordx2 {af(s,i,2,2*ee)}, v37, {SWS}, {sT4} offen offset:3072 sc1"+NT("nth")))
    return o
I4=min(LA4,OPT.get("i4",3)); r4=Ramp(p4x,I4,LA4)
for s in range(I4): e(*p4x(s))
WB=lambda s: 232 if s&1 else 216
WR=lambda s,t: A(PRE+16*s+4*t,4) if s<4 else V(WB(s)+4*t,4)
for s in range(14):
    vm=q.wait(s)
    mm=[[mfma(V(64+16*i+4*t,4),WR(s,t),af(s,i),V(64+16*i+4*t,4) if s else "0") for i in range(4)] for t in range(4)]
    ld=r4.step(s); P4Q=OPT.get("p4q",0)
    if 13-P4Q<=s<13: ld+=[q.add("w",x) for x in dma_wq2(s-13+P4Q)]
    if s==13:
        mi=lambda i:[mm[t][i] for t in range(4)]; wr=lambda i:[f"ds_write_b128 v{16+i}, {V(64+16*i+4*t,4)} offset:{t*1024}" for t in range(4)]
        e(f"s_waitcnt vmcnt({vm}) lgkmcnt(0)","s_barrier"); e(*(mi(1)+mi(2)+merge(mi(3),wr(1))+merge(mi(0),wr(2))+wr(3))); continue
    pstep(mm,rd4v(WB(s+1),SLOT[s+1]*16384) if 3<=s<13 else [],ld,s<4,vm,s in(0,7))
stamp()
n0=len(L)
e("s_waitcnt lgkmcnt(0)","s_barrier")
for k in range(12): e(f"ds_read_b128 {V(128+4*k,4)}, v20 offset:{k*1024}")
e("s_waitcnt lgkmcnt(8)")
for i in range(8): e(f"v_pk_add_f32 {V(64+2*i,2)}, {V(64+2*i,2)}, {V(128+2*i,2)}")
e("s_waitcnt lgkmcnt(0)")
for i in range(8): e(f"v_pk_add_f32 {V(144+2*i,2)}, {V(144+2*i,2)}, {V(160+2*i,2)}")
for i in range(8): e(f"v_pk_add_f32 {V(128+2*i,2)}, {V(64+2*i,2)}, {V(144+2*i,2)}")
red=L[n0:]; del L[n0:]
e(f"s_cmp_lg_u32 {sL}, 0","s_cbranch_scc1 Lout")
wq=sum([dma_wq2(k) for k in range(P4Q,6)],[]); N1=OPT.get("n1",4)
e(*spread(red,wq[:N1],0.0,0.4))
xepi(128,XA_OFF,SA_OFF,16*MB)
stamp()
e(*wq[N1:N1+10]); signal(10); e(*wq[N1+10:])
e(f"s_mov_b32 {sL}, 1",f"s_mov_b32 {sLB}, {16*MB}","s_branch Llayer")
e("Lout:")
e(*red)
xepi(128,0,0,0,False)
for u in range(2):
    for i in range(2): e(f"v_permlane16_swap_b32 v{vRES+4*u+i}, v{vRES+4*u+2+i}")
for u in range(2): e(f"buffer_store_dwordx4 {V(vRES+4*u,4)}, v59, {SOUT}, s52 offen offset:{u*64}"+(" sc1" if OPT.get("osc") else ""))
e("Lfin:","s_waitcnt vmcnt(0)")
if OPT["stamp"]:
    stamp()
    e(f"s_cmp_lg_u32 {sW}, 0","s_cbranch_scc1 Lend",f"s_lshl_b32 {sT0}, {sB}, 7",f"s_add_u32 {sT0}, {sT0}, {ST_OFF}","s_mov_b64 exec, 1","v_mov_b32 v18, 0")
    for i in range(30): e(f"v_mov_b32 v17, s{64+i}",f"buffer_store_dword v17, v18, {SWS}, {sT0} offen offset:{4*i}")
if OPT.get("dbgst"):
    e(f"s_cmp_lg_u32 {sB}, {OPT['dbgst']}","s_cbranch_scc1 Lend")
    for i in list(range(1,13))+[16,28]: e(f"s_sub_u32 s94, s{64+i}, s64","v_mov_b32 v17, s94",f"buffer_store_dword v17, v18, {SDBG}, 0 offen offset:{4*(min(i,13)+(i==28))+4}")
e("Lend:","s_endpgm")
K=NAME+"_kernel"
hdr=f"""; @launch grid=(256,1,1) block=(256,1,1) lds=163840
.amdgcn_target "amdgcn-amd-amdhsa--gfx950"
.text
.globl {K}
.p2align 8
.type {K},@function
{K}:
"""
ftr=f"""
.section .rodata,"a"
.p2align 6
.amdhsa_kernel {K}
  .amdhsa_next_free_vgpr 512
  .amdhsa_next_free_sgpr 102
  .amdhsa_accum_offset 256
  .amdhsa_group_segment_fixed_size 0
  .amdhsa_kernarg_size 72
  .amdhsa_user_sgpr_count 2
  .amdhsa_user_sgpr_kernarg_segment_ptr 1
  .amdhsa_system_sgpr_workgroup_id_x 1
.end_amdhsa_kernel
"""
open(sys.argv[1],"w").write(hdr+"\n".join(fix(L))+ftr)
print("stamps",nst[0],"lines",len(L))
```
